```python
import torch

def _softmax(x, axis=-1):
    return torch.softmax(x, dim=axis)
def _gelu(x):
    return torch.nn.functional.gelu(x, approximate="tanh")
def _silu(x):
    return torch.nn.functional.silu(x)
def _sigmoid(x):
    return torch.sigmoid(x)
def _layernorm(x, axis=-1, eps=1e-5):
    m = x.mean(dim=axis, keepdim=True)
    v = x.var(dim=axis, keepdim=True, unbiased=False)
    return (x - m) / torch.sqrt(v + eps)
def _scatter_add(tgt, idx, src, axis=0):
    return tgt.clone().index_add_(axis, idx, src)
def _segment_sum(src, seg, n):
    out = torch.zeros((n,) + src.shape[1:], dtype=src.dtype)
    return out.index_add_(0, seg, src)
def _pad(x, pw):
    flat = tuple(v for pair in reversed(pw) for v in pair)
    return torch.nn.functional.pad(x, flat)

kernel_name = 'concat_heads__gqa_block_cached__gqa_block_cached__near_ridge'

def setup_inputs():

    _w = (lambda a: (lambda t: t.to(torch.bfloat16) if t.is_floating_point() else t)(torch.as_tensor(a)))
    def _A_setup():
        B, Sq, D = 8, 64, 448
        Hq, Hkv, Sk, Dh = 16, 8, 64, 256
        assert Hq % Hkv == 0, (Hq, Hkv)
        return {
            "x": _w((lambda *s: torch.randn(*s, dtype=torch.bfloat16) * 0.8)(B, Sq, D)),
            "k_cache": _w((lambda *s: torch.randn(*s, dtype=torch.bfloat16) * 0.8)(B, Hkv, Sk, Dh)),
            "v_cache": _w((lambda *s: torch.randn(*s, dtype=torch.bfloat16) * 0.05)(B, Hkv, Sk, Dh)),
            "wq": _w((lambda *s: torch.randn(*s, dtype=torch.bfloat16) * 0.8)(D, Hq * Dh) * (D ** -0.5)),
            "wo": _w((lambda *s: torch.randn(*s, dtype=torch.bfloat16) * 0.05)(Hq * Dh, D) * ((Hq * Dh) ** -0.5)),
        }
    _A_in = _A_setup()

    def _B_setup():
        B, Sq, D = 8, 64, 448
        Hq, Hkv, Sk, Dh = 16, 8, 64, 256
        assert Hq % Hkv == 0, (Hq, Hkv)
        return {
            "x": _w((lambda *s: torch.randn(*s, dtype=torch.bfloat16) * 0.8)(B, Sq, D)),
            "k_cache": _w((lambda *s: torch.randn(*s, dtype=torch.bfloat16) * 0.8)(B, Hkv, Sk, Dh)),
            "v_cache": _w((lambda *s: torch.randn(*s, dtype=torch.bfloat16) * 0.05)(B, Hkv, Sk, Dh)),
            "wq": _w((lambda *s: torch.randn(*s, dtype=torch.bfloat16) * 0.8)(D, Hq * Dh) * (D ** -0.5)),
            "wo": _w((lambda *s: torch.randn(*s, dtype=torch.bfloat16) * 0.05)(Hq * Dh, D) * ((Hq * Dh) ** -0.5)),
        }
    _B_in = _B_setup()

    return {
        "A_x": _A_in["x"],
        "A_k_cache": _A_in["k_cache"],
        "A_v_cache": _A_in["v_cache"],
        "A_wq": _A_in["wq"],
        "A_wo": _A_in["wo"],
        "B_x": _B_in["x"],
        "B_k_cache": _B_in["k_cache"],
        "B_v_cache": _B_in["v_cache"],
        "B_wq": _B_in["wq"],
        "B_wo": _B_in["wo"],
    }

def reference(A_x, A_k_cache, A_v_cache, A_wq, A_wo, B_x, B_k_cache, B_v_cache, B_wq, B_wo):
    def _A_ref(x, k_cache, v_cache, wq, wo):
        B, Sq, D = x.shape
        Hq, Dh = 16, 256
        Hkv = k_cache.shape[1]
        rep = Hq // Hkv
        q = (lambda x, *d: x.permute(*d))((x @ wq).reshape(B, Sq, Hq, Dh), 0, 2, 1, 3)
        k = (lambda x, n, axis: torch.repeat_interleave(x, n, dim=axis))(k_cache, rep, axis=1)
        v = (lambda x, n, axis: torch.repeat_interleave(x, n, dim=axis))(v_cache, rep, axis=1)
        scores = torch.einsum("bhqd,bhkd->bhqk", q, k) * (Dh ** -0.5)
        p = _softmax(scores, axis=-1)
        o = torch.einsum("bhqk,bhkd->bhqd", p, v)
        return (lambda x, *d: x.permute(*d))(o, 0, 2, 1, 3).reshape(B, Sq, Hq * Dh) @ wo

    def _B_ref(x, k_cache, v_cache, wq, wo):
        B, Sq, D = x.shape
        Hq, Dh = 16, 256
        Hkv = k_cache.shape[1]
        rep = Hq // Hkv
        q = (lambda x, *d: x.permute(*d))((x @ wq).reshape(B, Sq, Hq, Dh), 0, 2, 1, 3)
        k = (lambda x, n, axis: torch.repeat_interleave(x, n, dim=axis))(k_cache, rep, axis=1)
        v = (lambda x, n, axis: torch.repeat_interleave(x, n, dim=axis))(v_cache, rep, axis=1)
        scores = torch.einsum("bhqd,bhkd->bhqk", q, k) * (Dh ** -0.5)
        p = _softmax(scores, axis=-1)
        o = torch.einsum("bhqk,bhkd->bhqd", p, v)
        return (lambda x, *d: x.permute(*d))(o, 0, 2, 1, 3).reshape(B, Sq, Hq * Dh) @ wo

    a = _A_ref(A_x, A_k_cache, A_v_cache, A_wq, A_wo)
    b = _B_ref(B_x, B_k_cache, B_v_cache, B_wq, B_wo)
    return torch.concatenate([a, b], axis=-1)
```

```python
NAME = 'concat_heads__gqa_block_cached__gqa_block_cached__near_ridge'

HEADER_COMMENTS = open('cdna_kernels/%s.s.ref' % NAME).read().split('; Override launch geometry')[0]

class Asm:
    def __init__(self):
        self.lines = []
        self.nlabel = 0
    def __call__(self, s=''):
        for l in s.split('\n'):
            self.lines.append('    ' + l.strip() if l.strip() and not l.strip().endswith(':') else l.strip())
    def label(self, name):
        self.lines.append(name + ':')
    def newlabel(self, stem='L'):
        self.nlabel += 1
        return '%s_%d' % (stem, self.nlabel)
    def comment(self, s):
        self.lines.append('    ; ' + s)
    def text(self):
        return '\n'.join(self.lines) + '\n'

def kernel_file(kernels, launches):
    out = [HEADER_COMMENTS.rstrip('\n')]
    if len(launches) == 1 and launches[0][0] == NAME + '_kernel':
        _, g, b, lds = launches[0]
        out.append('; @launch grid=(%d,%d,%d) block=(%d,%d,%d) lds=%d' % (g + b + (lds,)))
    else:
        for lab, g, b, lds in launches:
            out.append('; @launch kernel=%s grid=(%d,%d,%d) block=(%d,%d,%d) lds=%d' % ((lab,) + g + b + (lds,)))
    out.append('.amdgcn_target "amdgcn-amd-amdhsa--gfx950"')
    out.append('.text')
    for lab, body, vg, sg, acc in kernels:
        out.append('.globl %s' % lab)
        out.append('.p2align 8')
        out.append('.type %s,@function' % lab)
        out.append(lab + ':')
        out.append(body)
    out.append('.section .rodata,"a"')
    for lab, body, vg, sg, acc in kernels:
        out.append('.p2align 6')
        out.append('.amdhsa_kernel %s' % lab)
        out.append('  .amdhsa_next_free_vgpr %d' % vg)
        out.append('  .amdhsa_next_free_sgpr %d' % sg)
        out.append('  .amdhsa_accum_offset %d' % acc)
        out.append('  .amdhsa_group_segment_fixed_size 0')
        out.append('  .amdhsa_kernarg_size 104')
        out.append('  .amdhsa_user_sgpr_count 2')
        out.append('  .amdhsa_user_sgpr_kernarg_segment_ptr 1')
        out.append('  .amdhsa_system_sgpr_workgroup_id_x 1')
        out.append('.end_amdhsa_kernel')
    return '\n'.join(out) + '\n'
```

```python
import sys
from asmlib import *

SLOT = 40960
XBUF = 3 * SLOT
LDS_BYTES = XBUF + 32768
PART_BYTES = 256 * 57344
STAMP_OFF = 128 << 20

class Cfg:
    stamps = False
    nt = True
    rotate = False
    touch = False

def srd(a, d, src, size):
    a('s_mov_b32 s%d, s%d' % (d, src))
    a('s_and_b32 s%d, s%d, 0xffff' % (d + 1, src + 1))
    a('s_mov_b32 s%d, %d' % (d + 2, size))
    a('s_mov_b32 s%d, 0x20000' % (d + 3))

def gen_main(cfg):
    a = Asm()
    NT = ' nt' if cfg.nt else ''
    def stamp(n):
        if cfg.stamps:
            a('s_memrealtime s[%d:%d]' % (70 + 2 * n, 71 + 2 * n))
    a('s_cmp_ge_u32 s2, 256')
    a('s_cbranch_scc1 L_done')
    stamp(0)
    a('s_and_b32 s3, s2, 7')
    a('s_lshr_b32 s4, s2, 3')
    a('s_lshr_b32 s5, s3, 2')
    a('s_and_b32 s6, s3, 3')
    a('s_lshr_b32 s7, s4, 2')
    a('s_and_b32 s8, s4, 3')
    a('s_lshl_b32 s9, s6, 2')
    a('s_add_u32 s9, s9, s8')
    a('s_lshr_b32 s10, s9, 1')
    a('s_mul_i32 s11, s5, 40')
    a('s_add_u32 s12, s0, s11')
    a('s_addc_u32 s13, s1, 0')
    a('s_load_dwordx8 s[16:23], s[12:13], 0')
    a('s_load_dwordx2 s[24:25], s[12:13], 32')
    a('s_load_dwordx2 s[26:27], s[0:1], 96')
    a('v_lshrrev_b32 v1, 6, v0')
    a('v_and_b32 v2, 63, v0')
    a('v_readfirstlane_b32 s14, v1')
    a('s_waitcnt lgkmcnt(0)')
    srd(a, 32, 16, 458752); srd(a, 36, 18, 2097152); srd(a, 40, 20, 2097152); srd(a, 44, 22, 3670016); srd(a, 48, 24, 3670016)
    srd(a, 52, 26, PART_BYTES)
    if cfg.rotate:
        a('s_cmp_eq_u32 s7, 7')
        a('s_cselect_b32 s15, 0, s7')
    else:
        a('s_mov_b32 s15, 0')
    a('s_cmp_ge_u32 s14, 4')
    a('s_cbranch_scc1 L_loader')

    w = 's14'
    a('v_and_b32 v3, 15, v2')
    a('v_lshrrev_b32 v4, 4, v2')
    a('v_lshrrev_b32 v5, 2, v3')
    a('v_and_b32 v6, 3, v2')
    a('v_lshlrev_b32 v7, 3, v4')
    a('v_add_u32 v7, v7, v5')
    a('v_lshlrev_b32 v7, 9, v7')
    a('v_lshlrev_b32 v8, 3, v6')
    a('v_add_u32 v7, v7, v8')
    a('v_xor_b32 v8, s14, v4')
    a('v_and_b32 v8, 1, v8')
    a('v_lshlrev_b32 v8, 2, v8')
    a('s_lshr_b32 s28, s14, 1')
    a('s_lshl_b32 s28, s28, 3')
    a('v_add_u32 v8, s28, v8')
    a('v_add_u32 v8, v8, v5')
    a('v_lshlrev_b32 v8, 5, v8')
    a('v_add_u32 v10, v7, v8')
    for mt in range(1, 4):
        a('v_xor_b32 v%d, %d, v10' % (10 + mt, 32 * mt))
    a('v_lshrrev_b32 v7, 1, v3')
    a('v_xor_b32 v7, v7, v4')
    a('v_lshlrev_b32 v7, 4, v7')
    a('v_lshlrev_b32 v8, 7, v3')
    a('v_add_u32 v7, v7, v8')
    a('v_add_u32 v14, 32768, v7')
    a('v_xor_b32 v15, 64, v14')
    a('v_xor_b32 v7, v3, v4')
    a('v_lshlrev_b32 v7, 4, v7')
    a('v_lshlrev_b32 v8, 9, v3')
    a('v_add_u32 v16, v7, v8')
    for j in range(1, 4):
        a('v_xor_b32 v%d, %d, v16' % (16 + j, 64 * j))
    a('v_lshrrev_b32 v7, 1, v4')
    a('s_lshl_b32 s28, s14, 3')
    a('v_or_b32 v7, s28, v7')
    a('v_xor_b32 v7, v7, v3')
    a('v_lshlrev_b32 v7, 4, v7')
    a('v_lshlrev_b32 v8, 9, v3')
    a('v_add_u32 v7, v7, v8')
    a('v_and_b32 v8, 1, v4')
    a('v_lshlrev_b32 v8, 3, v8')
    a('v_add_u32 v7, v7, v8')
    a('v_add_u32 v20, %d, v7' % XBUF)
    a('v_lshrrev_b32 v7, 1, v4')
    a('v_xor_b32 v7, v7, v3')
    a('v_lshlrev_b32 v7, 4, v7')
    a('v_lshlrev_b32 v9, 9, v3')
    a('v_add_u32 v7, v7, v9')
    a('v_add_u32 v7, v7, v8')
    a('s_lshl_b32 s28, s14, 13')
    a('s_add_u32 s28, s28, %d' % XBUF)
    a('v_add_u32 v21, s28, v7')
    a('v_lshlrev_b32 v7, 2, v4')
    a('v_add_u32 v7, v7, v5')
    a('v_and_b32 v9, 7, v7')
    a('v_lshlrev_b32 v7, 9, v7')
    a('v_lshlrev_b32 v9, 5, v9')
    a('v_add_u32 v7, v7, v9')
    a('v_lshlrev_b32 v9, 3, v6')
    a('v_add_u32 v22, v7, v9')
    a('v_lshlrev_b32 v7, 3, v4')
    a('v_add_u32 v7, v7, v5')
    a('v_lshlrev_b32 v7, 7, v7')
    a('v_lshrrev_b32 v8, 1, v5')
    a('v_and_b32 v9, 1, v4')
    a('v_lshlrev_b32 v9, 1, v9')
    a('v_or_b32 v8, v8, v9')
    a('v_xor_b32 v8, s14, v8')
    a('v_lshlrev_b32 v8, 5, v8')
    a('v_add_u32 v7, v7, v8')
    a('v_lshlrev_b32 v8, 3, v6')
    a('v_add_u32 v23, v7, v8')
    a('v_lshlrev_b32 v24, 4, v2')
    a('s_lshl_b32 s29, s5, 3')
    a('s_add_u32 s29, s29, s7')
    a('s_lshl_b32 s29, s29, 4')
    a('s_add_u32 s29, s29, s9')
    a('s_mul_i32 s29, s29, 57344')
    a('s_lshl_b32 s28, s14, 11')
    a('s_add_u32 s29, s29, s28')
    ACC = 64
    for r in range(64):
        a('v_mov_b32 v%d, 0' % (ACC + r))
    a('s_mov_b32 s30, 0')
    a('s_mov_b32 s31, 7')
    a.label('L_a1')
    a('s_barrier')
    for i in range(4): a('v_add_u32 v%d, s30, v%d' % (26 + i, 10 + i))
    for i in range(2): a('v_add_u32 v%d, s30, v%d' % (30 + i, 14 + i))
    def rdA(s, mt):
        base = (128 if s == 0 else 160) + 4 * mt
        a('ds_read_b64_tr_b16 v[%d:%d], v%d offset:%d' % (base, base + 1, 26 + mt, s * 16384))
        a('ds_read_b64_tr_b16 v[%d:%d], v%d offset:%d' % (base + 2, base + 3, 26 + mt, s * 16384 + 2048))
    def rdB(s, qt):
        base = (144 if s == 0 else 176) + 4 * qt
        a('ds_read_b128 v[%d:%d], v%d offset:%d' % (base, base + 3, 30 + s, qt * 2048))
    def mf(s, mt):
        ab = (128 if s == 0 else 160) + 4 * mt
        for qt in range(4):
            bb = (144 if s == 0 else 176) + 4 * qt
            acc = ACC + 4 * (mt * 4 + qt)
            a('v_mfma_f32_16x16x32_bf16 v[%d:%d], v[%d:%d], v[%d:%d], v[%d:%d]' % (acc, acc + 3, ab, ab + 3, bb, bb + 3, acc, acc + 3))
    for qt in range(4): rdB(0, qt)
    for mt in range(4): rdA(0, mt)
    a('s_waitcnt lgkmcnt(6)')
    for qt in range(4): rdB(1, qt)
    mf(0, 0)
    a('s_waitcnt lgkmcnt(8)')
    rdA(1, 0); rdA(1, 1)
    mf(0, 1)
    a('s_waitcnt lgkmcnt(10)')
    rdA(1, 2); rdA(1, 3)
    mf(0, 2)
    a('s_waitcnt lgkmcnt(12)')
    mf(0, 3)
    a('s_waitcnt lgkmcnt(6)')
    mf(1, 0)
    a('s_waitcnt lgkmcnt(4)')
    mf(1, 1)
    a('s_waitcnt lgkmcnt(2)')
    mf(1, 2)
    a('s_waitcnt lgkmcnt(0)')
    mf(1, 3)
    a('s_add_u32 s30, s30, %d' % SLOT)
    a('s_cmp_ge_u32 s30, %d' % (3 * SLOT))
    a('s_cselect_b32 s30, 0, s30')
    a('s_sub_u32 s31, s31, 1')
    a('s_cmp_lg_u32 s31, 0')
    a('s_cbranch_scc1 L_a1')
    stamp(1)
    a('s_nop 7')
    for mt in range(4):
        if mt: a('v_xor_b32 v25, %d, v20' % (32 * mt))
        for qt in range(4):
            acc = ACC + 4 * (mt * 4 + qt)
            t = 128 + 2 * (mt * 4 + qt)
            a('v_cvt_pk_bf16_f32 v%d, v%d, v%d' % (t, acc, acc + 1))
            a('v_cvt_pk_bf16_f32 v%d, v%d, v%d' % (t + 1, acc + 2, acc + 3))
            a('ds_write_b64 v%d, v[%d:%d] offset:%d' % (20 if mt == 0 else 25, t, t + 1, qt * 8192))
    a('s_waitcnt lgkmcnt(0)')
    a('s_barrier')
    KS = (7 % 3) * SLOT
    a('s_lshl_b32 s28, s14, 13')
    a('s_add_u32 s28, s28, %d' % XBUF)
    for j in range(4): a('v_add_u32 v%d, s28, v%d' % (26 + j, 16 + j))
    for j in range(4): a('v_add_u32 v%d, %d, v%d' % (32 + j, KS, 16 + j))
    QF = 128
    KF = 160
    SACC = 64
    def rdQ(s): a('ds_read_b128 v[%d:%d], v%d offset:%d' % (QF + 4 * s, QF + 4 * s + 3, 26 + (s & 3), (s >> 2) * 256))
    def rdK(s, kt):
        r = KF + 4 * ((s * 4 + kt) % 16)
        a('ds_read_b128 v[%d:%d], v%d offset:%d' % (r, r + 3, 32 + (s & 3), kt * 8192 + (s >> 2) * 256))
    def mfS(s, kt):
        r = KF + 4 * ((s * 4 + kt) % 16)
        acc = SACC + 4 * kt
        c = 'v[%d:%d]' % (acc, acc + 3) if s else '0'
        a('v_mfma_f32_16x16x32_bf16 v[%d:%d], v[%d:%d], v[%d:%d], %s' % (acc, acc + 3, r, r + 3, QF + 4 * s, QF + 4 * s + 3, c))
    for s in range(2):
        rdQ(s)
        for kt in range(4): rdK(s, kt)
    for s in range(8):
        if s + 2 < 8:
            rdQ(s + 2)
            for kt in range(4): rdK(s + 2, kt)
            a('s_waitcnt lgkmcnt(10)')
        elif s + 1 < 8:
            a('s_waitcnt lgkmcnt(5)')
        else:
            a('s_waitcnt lgkmcnt(0)')
        for kt in range(4): mfS(s, kt)
    a('s_nop 7')
    a('v_max3_f32 v36, v64, v65, v66')
    for r in range(67, 79, 2):
        a('v_max3_f32 v36, v36, v%d, v%d' % (r, r + 1))
    a('v_max_f32 v36, v36, v79')
    a('v_mov_b32 v37, v36')
    a('s_nop 1')
    a('v_permlane16_swap_b32 v36, v37')
    a('v_max_f32 v36, v36, v37')
    a('v_mov_b32 v37, v36')
    a('s_nop 1')
    a('v_permlane32_swap_b32 v36, v37')
    a('v_max_f32 v36, v36, v37')
    a('s_mov_b32 s28, 0x3db8aa3b')
    a('v_mul_f32 v36, s28, v36')
    for r in range(16):
        a('v_fma_f32 v%d, v%d, s28, -v36' % (64 + r, 64 + r))
    for r in range(16):
        a('v_exp_f32 v%d, v%d' % (64 + r, 64 + r))
    a('s_nop 0')
    a('v_add_f32 v38, v64, v65')
    for r in range(2, 16):
        a('v_add_f32 v38, v38, v%d' % (64 + r))
    a('v_mov_b32 v37, v38')
    a('s_nop 1')
    a('v_permlane16_swap_b32 v38, v37')
    a('v_add_f32 v38, v38, v37')
    a('v_mov_b32 v37, v38')
    a('s_nop 1')
    a('v_permlane32_swap_b32 v38, v37')
    a('v_add_f32 v38, v38, v37')
    a('v_rcp_f32 v38, v38')
    a('s_nop 0')
    for r in range(16):
        a('v_mul_f32 v%d, v%d, v38' % (64 + r, 64 + r))
    for s in range(2):
        for half in range(2):
            t = 64 + 4 * (2 * s + half)
            a('v_cvt_pk_bf16_f32 v%d, v%d, v%d' % (40 + 4 * s + 2 * half, t, t + 1))
            a('v_cvt_pk_bf16_f32 v%d, v%d, v%d' % (40 + 4 * s + 2 * half + 1, t + 2, t + 3))
    stamp(2)
    a('s_barrier')
    VS = (8 % 3) * SLOT
    for j in range(8):
        if j == 0: a('v_add_u32 v48, %d, v22' % VS)
        else:
            a('v_xor_b32 v%d, %d, v22' % (48 + j, 32 * j))
            a('v_add_u32 v%d, %d, v%d' % (48 + j, VS, 48 + j))
    OACC = 64
    VF = 128
    def rdV(dt):
        r = VF + 8 * (dt % 8)
        for s in range(2):
            for sec in range(2):
                a('ds_read_b64_tr_b16 v[%d:%d], v%d offset:%d' % (r + 4 * s + 2 * sec, r + 4 * s + 2 * sec + 1, 48 + (dt & 7), (dt >> 3) * 256 + s * 16384 + sec * 8192))
    def mfV(dt):
        r = VF + 8 * (dt % 8)
        acc = OACC + 4 * dt
        a('v_mfma_f32_16x16x32_bf16 v[%d:%d], v[%d:%d], v[40:43], 0' % (acc, acc + 3, r, r + 3))
        a('v_mfma_f32_16x16x32_bf16 v[%d:%d], v[%d:%d], v[44:47], v[%d:%d]' % (acc, acc + 3, r + 4, r + 7, acc, acc + 3))
    for dt in range(2): rdV(dt)
    for dt in range(16):
        if dt + 2 < 16:
            rdV(dt + 2)
            a('s_waitcnt lgkmcnt(8)')
        else:
            a('s_waitcnt lgkmcnt(%d)' % (4 * (15 - dt)))
        mfV(dt)
    a('s_nop 7')
    for dt in range(16):
        j = dt & 7
        if dt < 8:
            if j: a('v_xor_b32 v%d, %d, v21' % (48 + j, 32 * j))
            else: a('v_mov_b32 v48, v21')
        acc = OACC + 4 * dt
        t = 128 + 2 * dt
        a('v_cvt_pk_bf16_f32 v%d, v%d, v%d' % (t, acc, acc + 1))
        a('v_cvt_pk_bf16_f32 v%d, v%d, v%d' % (t + 1, acc + 2, acc + 3))
        a('ds_write_b64 v%d, v[%d:%d] offset:%d' % (48 + j, t, t + 1, (dt >> 3) * 256))
    a('s_waitcnt lgkmcnt(0)')
    stamp(3)
    a('s_barrier')
    OF = 128
    WF = 64
    PACC = 96
    PK = 112
    for j in range(4): a('v_add_u32 v%d, %d, v%d' % (26 + j, XBUF, 16 + j))
    def rdO(s, qt):
        r = OF + 4 * (s * 4 + qt)
        a('ds_read_b128 v[%d:%d], v%d offset:%d' % (r, r + 3, 26 + (s & 3), qt * 8192 + (s >> 2) * 256))
    def rdW(s):
        r = WF + 4 * s
        a('ds_read_b64_tr_b16 v[%d:%d], v32 offset:%d' % (r, r + 1, s * 4096))
        a('ds_read_b64_tr_b16 v[%d:%d], v32 offset:%d' % (r + 2, r + 3, s * 4096 + 512))
    def mfP(s):
        for qt in range(4):
            acc = PACC + 4 * qt
            c = 'v[%d:%d]' % (acc, acc + 3) if s else '0'
            a('v_mfma_f32_16x16x32_bf16 v[%d:%d], v[%d:%d], v[%d:%d], %s' % (acc, acc + 3, WF + 4 * s, WF + 4 * s + 3, OF + 4 * (s * 4 + qt), OF + 4 * (s * 4 + qt) + 3, c))
    def store_partial():
        a('s_nop 7')
        for qt in range(4):
            acc = PACC + 4 * qt
            a('v_cvt_pk_bf16_f32 v%d, v%d, v%d' % (PK + 2 * qt, acc, acc + 1))
            a('v_cvt_pk_bf16_f32 v%d, v%d, v%d' % (PK + 2 * qt + 1, acc + 2, acc + 3))
        a('buffer_store_dwordx4 v[%d:%d], v24, s[52:55], s31 offen' % (PK, PK + 3))
        a('buffer_store_dwordx4 v[%d:%d], v24, s[52:55], s31 offen offset:1024' % (PK + 4, PK + 7))
    a('s_mov_b32 s30, %d' % ((9 % 3) * SLOT))
    a('s_mov_b32 s28, s15')
    a('v_add_u32 v32, s30, v23')
    a('s_lshl_b32 s31, s28, 13')
    a('s_add_u32 s31, s31, s29')
    for s in range(2):
        rdW(s)
        for qt in range(4): rdO(s, qt)
    for s in range(8):
        if s + 2 < 8:
            a('s_waitcnt lgkmcnt(6)')
            rdW(s + 2)
            for qt in range(4): rdO(s + 2, qt)
        elif s + 1 < 8:
            a('s_waitcnt lgkmcnt(6)')
        else:
            a('s_waitcnt lgkmcnt(0)')
        mfP(s)
    store_partial()
    a('s_mov_b32 s27, 6')
    a.label('L_op')
    a('s_add_u32 s30, s30, %d' % SLOT)
    a('s_cmp_ge_u32 s30, %d' % (3 * SLOT))
    a('s_cselect_b32 s30, 0, s30')
    a('s_add_u32 s28, s28, 1')
    a('s_cmp_ge_u32 s28, 7')
    a('s_cselect_b32 s28, 0, s28')
    a('s_lshl_b32 s31, s28, 13')
    a('s_add_u32 s31, s31, s29')
    a('s_barrier')
    a('v_add_u32 v32, s30, v23')
    for s in range(7): rdW(s)
    for s in range(8):
        if s == 0:
            a('s_waitcnt lgkmcnt(12)')
            rdW(7)
        else:
            a('s_waitcnt lgkmcnt(%d)' % (2 * (7 - s)))
        mfP(s)
    store_partial()
    a('s_sub_u32 s27, s27, 1')
    a('s_cmp_lg_u32 s27, 0')
    a('s_cbranch_scc1 L_op')
    stamp(4)
    if cfg.stamps:
        a('s_waitcnt vmcnt(0)')
        stamp(5)
        a('s_cmp_lg_u32 s14, 0')
        a('s_cbranch_scc1 L_done')
        a('s_waitcnt lgkmcnt(0)')
        a('s_load_dwordx2 s[26:27], s[0:1], 96')
        a('s_waitcnt lgkmcnt(0)')
        a('s_add_u32 s26, s26, %d' % STAMP_OFF)
        a('s_addc_u32 s27, s27, 0')
        a('s_lshl_b32 s3, s2, 7')
        a('v_mov_b32 v14, s3')
        for n in range(6):
            a('v_mov_b32 v10, s%d' % (70 + 2 * n)); a('v_mov_b32 v11, s%d' % (71 + 2 * n))
            a('global_store_dwordx2 v14, v[10:11], s[26:27] offset:%d' % (8 * n))
            a('s_nop 1')
    a('s_endpgm')

    a.label('L_loader')
    a('s_sub_u32 s14, s14, 4')
    a('v_lshrrev_b32 v3, 5, v2')
    a('v_and_b32 v4, 31, v2')
    a('v_lshrrev_b32 v4, 1, v4')
    a('v_and_b32 v5, 1, v2')
    a('v_lshlrev_b32 v5, 4, v5')
    a('s_and_b32 s28, s14, 1')
    a('s_lshl_b32 s28, s28, 1')
    a('s_lshr_b32 s29, s14, 1')
    a('s_lshl_b32 s29, s29, 2')
    a('s_add_u32 s28, s28, s29')
    a('v_add_u32 v6, s28, v3')
    a('v_xor_b32 v6, v6, v4')
    a('v_lshlrev_b32 v6, 5, v6')
    a('v_lshlrev_b32 v7, 13, v3')
    a('v_add_u32 v6, v6, v7')
    a('v_add_u32 v10, v6, v5')
    a('v_lshrrev_b32 v6, 4, v2')
    a('s_and_b32 s28, s14, 1')
    a('s_lshl_b32 s28, s28, 2')
    a('v_add_u32 v6, s28, v6')
    a('v_and_b32 v7, 7, v2')
    a('v_xor_b32 v6, v6, v7')
    a('v_lshlrev_b32 v6, 4, v6')
    a('v_lshrrev_b32 v7, 3, v2')
    a('v_mul_u32_u24 v7, 896, v7')
    a('v_add_u32 v11, v6, v7')
    a('s_lshl_b32 s28, s14, 1')
    a('v_add_u32 v6, s28, v3')
    a('v_and_b32 v7, 31, v2')
    a('v_xor_b32 v7, v7, v6')
    a('v_lshlrev_b32 v7, 4, v7')
    a('v_lshlrev_b32 v8, 9, v3')
    a('v_add_u32 v12, v7, v8')
    a('v_xor_b32 v13, 128, v12')
    a('v_xor_b32 v7, v4, v6')
    a('v_lshlrev_b32 v7, 5, v7')
    a('v_add_u32 v7, v7, v8')
    a('v_add_u32 v14, v7, v5')
    a('v_lshrrev_b32 v6, 4, v2')
    a('v_and_b32 v6, 1, v6')
    a('s_and_b32 s28, s14, 1')
    a('s_lshl_b32 s28, s28, 1')
    a('v_or_b32 v6, s28, v6')
    a('v_and_b32 v7, 7, v2')
    a('v_lshrrev_b32 v7, 1, v7')
    a('v_xor_b32 v6, v6, v7')
    a('v_lshlrev_b32 v6, 5, v6')
    a('v_lshrrev_b32 v7, 3, v2')
    a('v_mul_u32_u24 v7, 896, v7')
    a('v_add_u32 v6, v6, v7')
    a('v_add_u32 v15, v6, v5')
    a('s_and_b32 s28, s14, 1')
    a('s_lshr_b32 s29, s14, 1')
    a('s_lshl_b32 s29, s29, 2')
    a('s_add_u32 s28, s28, s29')
    a('s_lshl_b32 s57, s28, 10')
    a('s_lshl_b32 s56, s28, 14')
    a('s_lshl_b32 s29, s9, 9')
    a('s_add_u32 s56, s56, s29')
    a('s_mul_i32 s58, s7, 57344')
    a('s_mul_i32 s29, s14, 7168')
    a('s_add_u32 s58, s58, s29')
    a('s_lshl_b32 s59, s14, 10')
    a('s_lshl_b32 s60, s7, 3')
    a('s_add_u32 s60, s60, s10')
    a('s_lshl_b32 s60, s60, 15')
    a('s_add_u32 s60, s60, s59')
    a('s_mul_i32 s61, s9, 229376')
    a('s_add_u32 s61, s61, s29')
    a('s_mov_b32 s62, 0')
    a('s_mov_b32 s63, s15')
    def adv_slot():
        a('s_add_u32 s62, s62, %d' % SLOT)
        a('s_cmp_ge_u32 s62, %d' % (3 * SLOT))
        a('s_cselect_b32 s62, 0, s62')
    def adv_chunk():
        a('s_add_u32 s63, s63, 1')
        a('s_cmp_ge_u32 s63, 7')
        a('s_cselect_b32 s63, 0, s63')
    def issue_A():
        a('s_lshl_b32 s64, s63, 19')
        a('s_add_u32 s64, s64, s56')
        a('s_add_u32 s65, s62, s57')
        a('s_lshl_b32 s66, s63, 7')
        a('s_add_u32 s66, s66, s58')
        a('s_add_u32 s67, s62, s59')
        a('s_add_u32 m0, s67, 32768')
        a('s_add_u32 s68, s66, %d' % (4 * 7168))
        a('buffer_load_dwordx4 v11, s[32:35], s66 offen%s lds' % NT)
        a('s_add_u32 m0, s67, %d' % (32768 + 4096))
        a('s_nop 0')
        a('buffer_load_dwordx4 v11, s[32:35], s68 offen%s lds' % NT)
        for n, j in enumerate((0, 2, 8, 10, 16, 18, 24, 26)):
            a('s_add_u32 m0, s65, %d' % (j * 1024))
            a('s_add_u32 s66, s64, %d' % (j * 16384))
            a('buffer_load_dwordx4 v10, s[44:47], s66 offen%s lds' % NT)
        adv_slot(); adv_chunk()
    def issue_KV(srdn, two):
        a('s_add_u32 s65, s62, s59')
        for n in range(8):
            a('s_add_u32 m0, s65, %d' % (n * 4096))
            a('s_add_u32 s66, s60, %d' % (n * 4096))
            a('buffer_load_dwordx4 v%d, s[%d:%d], s66 offen%s lds' % ((13 if (two and n & 1) else (12 if two else 14)), srdn, srdn + 3, NT))
        adv_slot()
    def issue_WO():
        a('s_lshl_b32 s64, s63, 7')
        a('s_add_u32 s64, s64, s61')
        a('s_add_u32 s65, s62, s59')
        for n in range(8):
            a('s_add_u32 m0, s65, %d' % (n * 4096))
            a('s_add_u32 s66, s64, %d' % (n * 4 * 7168))
            a('buffer_load_dwordx4 v15, s[48:51], s66 offen%s lds' % NT)
        adv_slot(); adv_chunk()
    issue_A(); issue_A(); issue_A()
    a('s_waitcnt vmcnt(20)')
    a('s_barrier')
    a('s_waitcnt vmcnt(10)')
    a('s_barrier')
    a('s_mov_b32 s69, 4')
    a.label('L_ld_a')
    issue_A()
    a('s_waitcnt vmcnt(10)')
    a('s_barrier')
    a('s_sub_u32 s69, s69, 1')
    a('s_cmp_lg_u32 s69, 0')
    a('s_cbranch_scc1 L_ld_a')
    issue_KV(36, True)
    a('s_waitcnt vmcnt(8)')
    a('s_barrier')
    issue_KV(40, False)
    a('s_waitcnt vmcnt(8)')
    a('s_barrier')
    a('s_mov_b32 s63, s15')
    a('s_mov_b32 s69, 7')
    a.label('L_ld_o')
    issue_WO()
    a('s_waitcnt vmcnt(8)')
    a('s_barrier')
    a('s_sub_u32 s69, s69, 1')
    a('s_cmp_lg_u32 s69, 0')
    a('s_cbranch_scc1 L_ld_o')
    a('s_waitcnt vmcnt(0)')
    a('s_barrier')
    a.label('L_done')
    a('s_endpgm')
    return a.text()

def gen_reduce(cfg):
    a = Asm()
    a('s_cmp_ge_u32 s2, 224')
    a('s_cbranch_scc1 R_done')
    a('s_load_dwordx2 s[4:5], s[0:1], 80')
    a('s_load_dwordx2 s[6:7], s[0:1], 96')
    a('v_lshrrev_b32 v1, 6, v0')
    a('v_and_b32 v2, 63, v0')
    a('v_readfirstlane_b32 s14, v1')
    a('s_lshr_b32 s8, s2, 1')
    a('s_mul_i32 s9, s8, 9363')
    a('s_lshr_b32 s9, s9, 16')
    a('s_mul_i32 s10, s9, 7')
    a('s_sub_u32 s10, s8, s10')
    a('s_and_b32 s11, s2, 1')
    a('s_lshl_b32 s11, s11, 1')
    a('s_lshr_b32 s12, s14, 1')
    a('s_add_u32 s11, s11, s12')
    a('s_and_b32 s12, s14, 1')
    a('s_waitcnt lgkmcnt(0)')
    srd(a, 16, 6, PART_BYTES)
    srd(a, 20, 4, 8 * 64 * 896 * 2)
    a('s_mul_i32 s13, s9, %d' % (16 * 57344))
    a('s_lshl_b32 s15, s10, 13')
    a('s_add_u32 s13, s13, s15')
    a('s_lshl_b32 s15, s11, 11')
    a('s_add_u32 s13, s13, s15')
    a('s_lshl_b32 s15, s12, 10')
    a('s_add_u32 s13, s13, s15')
    a('v_lshlrev_b32 v3, 4, v2')
    for h in range(16):
        a('buffer_load_dwordx4 v[%d:%d], v3, s[16:19], s13 offen' % (16 + 4 * h, 19 + 4 * h))
        if h < 15: a('s_add_u32 s13, s13, 57344')
    a('s_and_b32 s15, s9, 7')
    a('s_lshl_b32 s15, s15, 6')
    a('s_lshl_b32 s24, s12, 5')
    a('s_add_u32 s15, s15, s24')
    a('v_and_b32 v4, 15, v2')
    a('v_add_u32 v4, s15, v4')
    a('v_mul_u32_u24 v4, 1792, v4')
    a('s_lshr_b32 s24, s9, 3')
    a('s_mul_i32 s24, s24, 896')
    a('s_lshl_b32 s25, s10, 7')
    a('s_add_u32 s24, s24, s25')
    a('s_lshl_b32 s25, s11, 5')
    a('s_add_u32 s24, s24, s25')
    a('v_lshrrev_b32 v5, 4, v2')
    a('v_lshlrev_b32 v5, 3, v5')
    a('v_add_u32 v4, v4, v5')
    a('v_add_u32 v4, s24, v4')
    for i in range(8): a('v_mov_b32 v%d, 0' % (8 + i))
    for h in range(16):
        a('s_waitcnt vmcnt(%d)' % (15 - h))
        for d in range(4):
            r = 16 + 4 * h + d
            a('v_lshlrev_b32 v6, 16, v%d' % r)
            a('v_and_b32 v7, 0xffff0000, v%d' % r)
            a('v_add_f32 v%d, v%d, v6' % (8 + 2 * d, 8 + 2 * d))
            a('v_add_f32 v%d, v%d, v7' % (9 + 2 * d, 9 + 2 * d))
    for d in range(4):
        a('v_cvt_pk_bf16_f32 v%d, v%d, v%d' % (16 + d, 8 + 2 * d, 9 + 2 * d))
    a('buffer_store_dwordx2 v[16:17], v4, s[20:23], 0 offen')
    a('s_mov_b32 s24, %d' % (16 * 1792))
    a('buffer_store_dwordx2 v[18:19], v4, s[20:23], s24 offen')
    a.label('R_done')
    a('s_endpgm')
    return a.text()

def build(cfg):
    return kernel_file([('main_kernel', gen_main(cfg), 256, 102, 256), ('reduce_kernel', gen_reduce(cfg), 96, 32, 96)],
                       [('main_kernel', (256, 1, 1), (512, 1, 1), LDS_BYTES), ('reduce_kernel', (224, 1, 1), (256, 1, 1), 0)])

if __name__ == '__main__':
    cfg = Cfg()
    open('v1.s', 'w').write(build(cfg))
    cfg.stamps = True
    open('v1_st.s', 'w').write(build(cfg))
```

```python
import sys
from asmlib import *

SLOT = 40960
SL = [0, SLOT, 2 * SLOT, 3 * SLOT]
LDS_BYTES = 163840
P_OFF = 0
F_OFF = 2 << 20
FLAGP_OFF = 8 << 20
FLAGF_OFF = (8 << 20) + 256 * 128
WS_SRD_BYTES = (8 << 20) + 1280 * 128
STAMP_OFF = 128 << 20
SEQ = ['W0','W1','W2','W3','W4','W5','W6','K','B0','XQ','B1','B2','B3','B4','B5','B6','B7','P']
SLOT_OF = {it: SL[n % 4] for n, it in enumerate(SEQ)}
XBUF = SLOT_OF['XQ']
PBUF = SLOT_OF['P']

class Cfg:
    lst = None
    noload = False
    nocomp = False
    prio = 2
    poll_sleep = 1
    rot = True
    xtouch = True
    vtouch = True
    kpre = True
    first0 = True
    cap = 12
    capx = {}

def srd(a, d, src, size):
    a('s_mov_b32 s%d, s%d' % (d, src))
    a('s_and_b32 s%d, s%d, 0xffff' % (d + 1, src + 1))
    a('s_mov_b32 s%d, %d' % (d + 2, size))
    a('s_mov_b32 s%d, 0x20000' % (d + 3))

def gen_main(cfg):
    class A2(Asm):
        inloader = False; intail = False
        def __call__(self, s=''):
            t = s.strip()
            if cfg.noload and t.startswith('buffer_load') and self.inloader and ' lds' in t: return
            if cfg.nocomp and not self.inloader and not self.intail and (t.startswith('ds_read') or t.startswith('v_mfma') or t.startswith('ds_write')): return
            Asm.__call__(self, s)
    a = A2()
    nst = [0]
    def lstamp(role_ok, vreg):
        if cfg.lst is None or not role_ok: return
        n = nst[0]; nst[0] += 1
        a('s_memrealtime s[76:77]')
        a('s_waitcnt lgkmcnt(0)')
        a('v_writelane_b32 v%d, s76, %d' % (vreg, n))
    comp_st = cfg.lst is not None and cfg.lst < 4
    load_st = cfg.lst is not None and cfg.lst >= 4
    CV = 1; LV = 30

    def run_phase(mfs, old_n, reads_new, events=None, fill=None, per=1, maxout=15, pre=0, done0=-1, nfill=1):
        issued = old_n; done = done0
        allr = [None] * old_n + list(reads_new)
        fill_ = list(fill or [])
        ev = events or {}
        k = 0
        while k < pre and issued < len(allr) and allr[issued][1] < 0 and (issued - 1 - done) < maxout:
            a(allr[issued][0]); issued += 1; k += 1
        for mi, (txt, need) in enumerate(mfs):
            while need >= issued:
                assert allr[issued][1] <= mi - 1, (mi, issued)
                if (issued - 1 - done) >= maxout:
                    a('s_waitcnt lgkmcnt(%d)' % (maxout - 1)); done = issued - maxout
                a(allr[issued][0]); issued += 1
            if need > done:
                a('s_waitcnt lgkmcnt(%d)' % (issued - 1 - need)); done = need
            a(txt)
            for e in ev.get(mi, []): a(e)
            k = 0
            while k < per and issued < len(allr) and allr[issued][1] <= mi and (issued - 1 - done) < maxout:
                a(allr[issued][0]); issued += 1; k += 1
            k = 0
            while k < nfill and fill_ and fill_[0][1] <= mi:
                a(fill_.pop(0)[0]); k += 1
        while issued < len(allr):
            if (issued - 1 - done) >= maxout:
                a('s_waitcnt lgkmcnt(%d)' % (maxout - 1)); done = issued - maxout
            a(allr[issued][0]); issued += 1
        for f in fill_: a(f[0])
        return issued - 1 - done

    a('s_cmp_ge_u32 s2, 256')
    a('s_cbranch_scc1 L_done')
    a('s_and_b32 s3, s2, 7')
    a('s_lshr_b32 s5, s3, 2')
    a('s_mul_i32 s11, s5, 40')
    a('s_add_u32 s12, s0, s11')
    a('s_addc_u32 s13, s1, 0')
    a('s_load_dwordx8 s[16:23], s[12:13], 0')
    a('s_load_dwordx2 s[24:25], s[12:13], 32')
    a('s_load_dwordx4 s[28:31], s[0:1], 80')
    a('s_load_dwordx2 s[26:27], s[0:1], 96')
    if cfg.lst is not None:
        a('s_memrealtime s[78:79]')
    a('v_lshrrev_b32 v1, 6, v0')
    a('v_and_b32 v2, 63, v0')
    a('v_readfirstlane_b32 s14, v1')
    a('s_lshr_b32 s4, s2, 3')
    a('s_and_b32 s6, s3, 3')
    a('s_lshr_b32 s7, s4, 2')
    a('s_and_b32 s8, s4, 3')
    a('s_lshl2_add_u32 s9, s6, s8')
    a('s_lshr_b32 s10, s9, 1')
    a('s_lshl3_add_u32 s15, s5, s7')
    a('s_cmp_ge_u32 s14, 4')
    a('s_cbranch_scc1 L_loader')

    if cfg.prio: a('s_setprio %d' % cfg.prio)
    a('v_and_b32 v3, 15, v2')
    a('v_lshrrev_b32 v4, 4, v2')
    a('v_lshrrev_b32 v5, 2, v3')
    a('v_and_b32 v6, 3, v2')
    a('v_lshlrev_b32 v7, 3, v4')
    a('v_add_u32 v7, v7, v5')
    a('v_lshlrev_b32 v9, 9, v7')
    a('v_lshlrev_b32 v8, 3, v6')
    a('v_add_u32 v9, v9, v8')
    a('v_xor_b32 v8, s14, v4')
    a('v_and_b32 v8, 1, v8')
    a('v_lshlrev_b32 v8, 2, v8')
    a('s_lshr_b32 s32, s14, 1')
    a('s_lshl_b32 s32, s32, 3')
    a('v_add_u32 v8, s32, v8')
    a('v_add_u32 v8, v8, v5')
    a('v_lshlrev_b32 v8, 5, v8')
    a('v_add_u32 v10, v9, v8')
    for mt in range(1, 4):
        a('v_xor_b32 v%d, %d, v10' % (10 + mt, 32 * mt))
    a('v_lshlrev_b32 v9, 8, v7')
    a('v_and_b32 v8, 1, v4')
    a('v_lshlrev_b32 v8, 2, v8')
    a('v_add_u32 v8, v8, v5')
    a('s_lshl_b32 s32, s14, 1')
    a('v_xor_b32 v8, s32, v8')
    a('v_lshlrev_b32 v8, 5, v8')
    a('v_add_u32 v9, v9, v8')
    a('v_lshlrev_b32 v8, 3, v6')
    a('v_add_u32 v21, v9, v8')
    a('v_xor_b32 v22, 32, v21')
    a('v_lshrrev_b32 v7, 1, v3')
    a('v_xor_b32 v7, v7, v4')
    a('v_lshlrev_b32 v7, 4, v7')
    a('v_lshlrev_b32 v8, 7, v3')
    a('v_add_u32 v7, v7, v8')
    a('v_add_u32 v14, 32768, v7')
    a('v_xor_b32 v15, 64, v14')
    a('v_xor_b32 v7, v3, v4')
    a('v_lshlrev_b32 v7, 4, v7')
    a('v_lshlrev_b32 v8, 9, v3')
    a('v_add_u32 v16, v7, v8')
    for j in range(1, 4):
        a('v_xor_b32 v%d, %d, v16' % (16 + j, 64 * j))
    a('v_lshrrev_b32 v7, 1, v4')
    a('s_lshl_b32 s32, s14, 3')
    a('v_or_b32 v7, s32, v7')
    a('v_xor_b32 v7, v7, v3')
    a('v_lshlrev_b32 v7, 4, v7')
    a('v_lshlrev_b32 v8, 9, v3')
    a('v_add_u32 v7, v7, v8')
    a('v_and_b32 v8, 1, v4')
    a('v_lshlrev_b32 v8, 3, v8')
    a('v_add_u32 v7, v7, v8')
    a('v_add_u32 v20, %d, v7' % XBUF)
    a('v_xor_b32 v3, 32, v20'); a('v_xor_b32 v5, 64, v20'); a('v_xor_b32 v6, 96, v20')
    a('v_lshlrev_b32 v23, 4, v2')
    a('v_and_b32 v7, 15, v2')
    a('v_mul_u32_u24 v7, 1792, v7')
    a('v_and_b32 v8, 1, v4')
    a('v_lshlrev_b32 v8, 5, v8')
    a('v_add_u32 v7, v7, v8')
    a('v_lshrrev_b32 v8, 1, v4')
    a('v_lshlrev_b32 v8, 4, v8')
    a('v_add_u32 v24, v7, v8')
    ACC0 = 64; ACC1 = 192
    for r in range(64):
        a('v_mov_b32 v%d, 0' % (ACC0 + r))
    a('s_mov_b32 s32, %d' % SLOT_OF['K'])
    for j in range(4): a('v_add_u32 v%d, s32, v%d' % (56 + j, 16 + j))
    a('s_mov_b32 s46, 0x3db8aa3b')
    a('s_waitcnt lgkmcnt(0)')
    if comp_st:
        a('v_writelane_b32 v%d, s78, 0' % CV); nst[0] = 1
    srd(a, 52, 26, WS_SRD_BYTES)
    a('s_lshl2_add_u32 s33, s15, s6')
    a('s_lshl2_add_u32 s33, s33, s8')
    a('s_lshl_b32 s33, s33, 13')
    a('s_lshl_b32 s32, s14, 11')
    a('s_add_u32 s33, s33, s32')
    def tr_reads(kind, s, m, after):
        base = (128 if s == 0 else 160) + 4 * m
        if kind == 'A': reg, off, d2 = 26 + m, s * 16384, 2048
        else: reg, off, d2 = 26 + (m & 1), (m >> 1) * 16384 + s * 8192, 1024
        return [('ds_read_b64_tr_b16 v[%d:%d], v%d offset:%d' % (base, base + 1, reg, off), after),
                ('ds_read_b64_tr_b16 v[%d:%d], v%d offset:%d' % (base + 2, base + 3, reg, off + d2), after)]
    def n_read(s, q, after):
        base = (144 if s == 0 else 176) + 4 * q
        return [('ds_read_b128 v[%d:%d], v%d offset:%d' % (base, base + 3, 30 + s, q * 2048), after)]
    def set_reads(kind, s, after):
        reads = []; idx = {}
        reads += tr_reads(kind, s, 0, after); idx[('T', 0)] = len(reads) - 1
        for q in range(4):
            reads += n_read(s, q, after); idx[('N', q)] = len(reads) - 1
        for m in range(1, 4):
            reads += tr_reads(kind, s, m, after); idx[('T', m)] = len(reads) - 1
        return reads, idx
    def mm(kind, s, m, q, accb):
        tb = (128 if s == 0 else 160) + 4 * m
        nb = (144 if s == 0 else 176) + 4 * q
        acc = accb + 4 * (m * 4 + q)
        A, B = (tb, nb) if kind == 'A' else (nb, tb)
        return 'v_mfma_f32_16x16x32_bf16 v[%d:%d], v[%d:%d], v[%d:%d], v[%d:%d]' % (acc, acc + 3, A, A + 3, B, B + 3, acc, acc + 3)
    def addr_upd(kind, slot):
        if kind == 'A':
            return ['v_add_u32 v%d, %s, v%d' % (26 + i, slot, 10 + i) for i in range(4)] + ['v_add_u32 v%d, %s, v%d' % (30 + i, slot, 14 + i) for i in range(2)]
        return ['v_add_u32 v%d, %s, v%d' % (26 + i, slot, 21 + i) for i in range(2)] + ['v_add_u32 v%d, %s, v%d' % (30 + i, slot, 14 + i) for i in range(2)]
    _, IDX = set_reads('A', 0, -1)
    def needs(m, q): return max(IDX[('T', m)], IDX[('N', q)])
    adv = ['s_add_u32 s34, s34, %d' % SLOT, 's_cmp_ge_u32 s34, %d' % (4 * SLOT), 's_cselect_b32 s34, 0, s34', 's_add_u32 s35, s35, 1']
    a('s_mov_b32 s34, 0')
    a('s_mov_b32 s35, 0')
    for t in addr_upd('A', 's34'): a(t)
    a('s_barrier')
    lstamp(comp_st, CV)
    for t, _ in set_reads('A', 0, -1)[0]: a(t)
    a.label('L_a1')
    mq = [(mm('A', 0, m, q, ACC0), needs(m, q)) for m in range(4) for q in range(4)]
    run_phase(mq, 12, set_reads('A', 1, -1)[0], fill=[(t, 8) for t in adv])
    mp = [(mm('A', 1, m, q, ACC0), needs(m, q)) for m in range(4) for q in range(4)]
    mp3 = list(mp); mp3[3] = (mp[3][0], 11)
    a('s_cmp_ge_u32 s35, 7')
    a('s_cbranch_scc1 L_a1_last')
    run_phase(mp3, 12, set_reads('A', 0, 3)[0], events={3: addr_upd('A', 's34') + ['s_barrier']})
    a('s_branch L_a1')
    a.label('L_a1_last')
    QF = 160; KF = 192; SACC = 32
    def kread(s, kt, after):
        n = s * 4 + kt
        r = KF + 4 * (n % 16)
        return ('ds_read_b128 v[%d:%d], v%d offset:%d' % (r, r + 3, 56 + (s & 3), kt * 8192 + (s >> 2) * 256), after)
    lds_ops = []
    if cfg.kpre:
        for s in range(4):
            for kt in range(4): lds_ops.append(kread(s, kt, -1))
    qaddr = [20, 3, 5, 6]
    cvq = []
    for mt in range(4):
        for qt in range(4):
            tl = mt * 4 + qt
            acc = ACC0 + 4 * tl; t = 128 + 2 * tl
            cvq.append(('v_cvt_pk_bf16_f32 v%d, v%d, v%d' % (t, acc, acc + 1), tl + 5))
            cvq.append(('v_cvt_pk_bf16_f32 v%d, v%d, v%d' % (t + 1, acc + 2, acc + 3), tl + 5))
    early_cv = [c for c in cvq if c[1] <= 15]
    late_cv = [c for c in cvq if c[1] > 15]
    run_phase(mp, 12, lds_ops, per=1, fill=early_cv, nfill=2)
    lstamp(comp_st, CV)
    def qwrite(tl):
        mt, qt = tl >> 2, tl & 3
        a('ds_write_b64 v%d, v[%d:%d] offset:%d' % (qaddr[mt], 128 + 2 * tl, 129 + 2 * tl, qt * 8192))
    for tl in range(11): qwrite(tl)
    for c in late_cv: a(c[0])
    for tl in range(11, 16): qwrite(tl)
    a('s_lshl_b32 s32, s14, 13')
    a('s_add_u32 s32, s32, %d' % XBUF)
    for j in range(4): a('v_add_u32 v%d, s32, v%d' % (26 + j, 16 + j))
    a('v_mov_b32 v62, 0')
    a('global_load_dwordx2 v[62:63], v62, s[30:31]')
    a('s_waitcnt lgkmcnt(0)')
    a('s_barrier')
    lstamp(comp_st, CV)
    reads = []; mf = []; idx = {}
    npre = 16 if cfg.kpre else 0
    order = []
    if cfg.kpre:
        for s in range(4): order.append(('Q', s))
        for s in range(4, 8):
            order.append(('Q', s))
            for kt in range(4): order.append(('K', s, kt))
    else:
        for s in range(8):
            order.append(('Q', s))
            for kt in range(4): order.append(('K', s, kt))
    for o in order:
        if o[0] == 'Q':
            s = o[1]
            reads.append(('ds_read_b128 v[%d:%d], v%d offset:%d' % (QF + 4 * s, QF + 4 * s + 3, 26 + (s & 3), (s >> 2) * 256), -1))
        else:
            s, kt = o[1], o[2]
            reads.append(kread(s, kt, s * 4 + kt - 16))
        idx[o] = len(reads) - 1
    for s in range(8):
        for kt in range(4):
            r = KF + 4 * ((s * 4 + kt) % 16)
            acc = SACC + 4 * kt
            c = 'v[%d:%d]' % (acc, acc + 3) if s else '0'
            need = max(idx[('Q', s)], idx.get(('K', s, kt), -1))
            mf.append(('v_mfma_f32_16x16x32_bf16 v[%d:%d], v[%d:%d], v[%d:%d], %s' % (acc, acc + 3, r, r + 3, QF + 4 * s, QF + 4 * s + 3, c), need))
    zero0 = [('v_mov_b32 v%d, 0' % (ACC0 + r), 0) for r in range(64)]
    run_phase(mf, 0, reads, pre=4, per=2, maxout=14, fill=zero0, nfill=2)
    for t in addr_upd('B', SLOT_OF['B0']): a(t)
    a('s_barrier')
    lstamp(comp_st, CV)
    for t, _ in set_reads('B', 0, -1)[0]: a(t)
    S = SACC
    sm = []
    sm += ['v_max3_f32 v48, v%d, v%d, v%d' % (S, S + 1, S + 2), 'v_max3_f32 v49, v%d, v%d, v%d' % (S + 3, S + 4, S + 5),
           'v_max3_f32 v50, v%d, v%d, v%d' % (S + 6, S + 7, S + 8), 'v_max3_f32 v51, v%d, v%d, v%d' % (S + 9, S + 10, S + 11),
           'v_max3_f32 v48, v48, v%d, v%d' % (S + 12, S + 13), 'v_max3_f32 v49, v49, v%d, v%d' % (S + 14, S + 15),
           'v_max3_f32 v48, v48, v50, v51', 'v_max_f32 v48, v48, v49',
           'v_mov_b32 v49, v48', 's_nop 1', 'v_permlane16_swap_b32 v48, v49', 'v_max_f32 v48, v48, v49',
           'v_mov_b32 v49, v48', 's_nop 1', 'v_permlane32_swap_b32 v48, v49', 'v_max_f32 v48, v48, v49', 'v_mul_f32 v48, s46, v48']
    sm += ['v_fma_f32 v%d, v%d, s46, -v48' % (S + r, S + r) for r in range(16)]
    sm += ['v_exp_f32 v%d, v%d' % (S + r, S + r) for r in range(16)]
    sm += ['v_add_f32 v50, v%d, v%d' % (S, S + 1), 'v_add_f32 v51, v%d, v%d' % (S + 2, S + 3)]
    for r in range(4, 16, 2):
        sm += ['v_add_f32 v50, v50, v%d' % (S + r), 'v_add_f32 v51, v51, v%d' % (S + 1 + r)]
    sm += ['v_add_f32 v50, v50, v51', 'v_mov_b32 v49, v50', 's_nop 1', 'v_permlane16_swap_b32 v50, v49', 'v_add_f32 v50, v50, v49',
           'v_mov_b32 v49, v50', 's_nop 1', 'v_permlane32_swap_b32 v50, v49', 'v_add_f32 v50, v50, v49', 'v_rcp_f32 v50, v50', 's_nop 0']
    sm += ['v_mul_f32 v%d, v%d, v50' % (S + r, S + r) for r in range(16)]
    for s in range(2):
        for half in range(2):
            t = S + 4 * (2 * s + half)
            sm += ['v_cvt_pk_bf16_f32 v%d, v%d, v%d' % (52 + 4 * s + 2 * half, t, t + 1), 'v_cvt_pk_bf16_f32 v%d, v%d, v%d' % (52 + 4 * s + 2 * half + 1, t + 2, t + 3)]
    sm += ['buffer_store_dwordx4 v[52:55], v23, s[52:55], s33 offen sc1', 'buffer_store_dwordx4 v[56:59], v23, s[52:55], s33 offen offset:1024 sc1']
    smq = [(t, 0) for t in sm[:48]]
    smp = [(t, 0) for t in sm[48:]]
    VW0 = 32; VW1 = 96; OUT = 64
    def vw_cvt(accb, dst, after):
        f = []
        for j in range(4):
            for sp in range(2):
                for half in range(2):
                    t = accb + 4 * (4 * j + 2 * sp + half)
                    d = dst + 4 * (2 * j + sp) + 2 * half
                    f.append(('v_cvt_pk_bf16_f32 v%d, v%d, v%d' % (d, t, t + 1), after))
                    f.append(('v_cvt_pk_bf16_f32 v%d, v%d, v%d' % (d + 1, t + 2, t + 3), after))
        return f
    zero1 = [('v_mov_b32 v%d, 0' % (ACC1 + r), 0) for r in range(64)]
    for n in range(8):
        accb = ACC0 if n < 4 else ACC1
        fillq = []; fillp = []; nq = 1; npf = 1
        if n == 0: fillq = smq; fillp = smp; nq = 3; npf = 3
        if 1 <= n <= 3:
            z = zero1[22 * (n - 1): 22 * n]
            fillq = z[:14]; fillp = z[14:]
        if n == 4: fillq = vw_cvt(ACC0, VW0, 6); nq = 2
        mq = [(mm('B', 0, m, q, accb), needs(m, q)) for m in range(4) for q in range(4)]
        run_phase(mq, 12, set_reads('B', 1, -1)[0], fill=fillq, nfill=nq)
        mp = [(mm('B', 1, m, q, accb), needs(m, q)) for m in range(4) for q in range(4)]
        mp[3] = (mp[3][0], 11)
        if n < 7:
            ev = addr_upd('B', SLOT_OF['B%d' % (n + 1)])
            if n == 2: ev = ev + ['s_waitcnt vmcnt(0)', 'v_readfirstlane_b32 s72, v62', 'v_readfirstlane_b32 s73, v63']
            run_phase(mp, 12, set_reads('B', 0, 3)[0], events={3: ev + ['s_barrier']}, fill=fillp, nfill=npf)
        else:
            run_phase(mp, 12, [])
    lstamp(comp_st, CV)
    if cfg.rot: a('s_lshr_b32 s32, s7, 2')
    else: a('s_mov_b32 s32, 0')
    a('s_lshl_b32 s32, s32, 14')
    a('s_xor_b32 s39, s32, 16384')
    a('s_add_u32 s32, s32, %d' % PBUF)
    a('s_add_u32 s39, s39, %d' % PBUF)
    a('v_add_u32 v26, s32, v23')
    a('v_add_u32 v27, s39, v23')
    a('s_barrier')
    PF = 128
    def p_reads(pair):
        reads = []; idx = {}
        for hh in range(2):
            for sp in range(2):
                for qt in range(4):
                    n = (hh * 2 + sp) * 4 + qt
                    r = PF + 4 * n + (64 if pair else 0)
                    reads.append(('ds_read_b128 v[%d:%d], v%d offset:%d' % (r, r + 3, 26 + pair, hh * 8192 + qt * 2048 + sp * 1024), -1)); idx[(hh, sp, qt)] = len(reads) - 1
        return reads, idx
    r0, i0 = p_reads(0)
    r1, i1 = p_reads(1)
    mfs = []; first = set()
    for pair in range(2):
        vw = VW0 if pair == 0 else VW1
        idx = i0 if pair == 0 else i1
        for hh in range(2):
            for sp in range(2):
                for nt in range(2):
                    for qt in range(4):
                        j = 2 * hh + nt
                        A = vw + 4 * (2 * j + sp)
                        n = (hh * 2 + sp) * 4 + qt
                        B = PF + 4 * n + (64 if pair else 0)
                        acc = OUT + 4 * (nt * 4 + qt)
                        c = 'v[%d:%d]' % (acc, acc + 3) if (nt, qt) in first else '0'
                        first.add((nt, qt))
                        mfs.append(('v_mfma_f32_16x16x32_bf16 v[%d:%d], v[%d:%d], v[%d:%d], %s' % (acc, acc + 3, A, A + 3, B, B + 3, c),
                                    idx[(hh, sp, qt)] + (16 if pair else 0)))
    cv1 = vw_cvt(ACC1, VW1, 2)
    r1b = [(t, 19) for t, _ in r1]
    setup = ['s_lshl2_add_u32 s33, s15, s8', 's_lshl_b32 s33, s33, 16', 's_add_u32 s33, s33, %d' % F_OFF, 's_lshl_b32 s32, s14, 10', 's_add_u32 s33, s33, s32',
             's_lshl_b32 s32, s6, 12', 's_add_u32 s36, s33, s32', 's_lshl_b32 s32, s6, 14', 's_add_u32 s37, s33, s32', 's_lshl2_add_u32 s38, s8, s14',
             's_lshl2_add_u32 s40, s15, s8', 's_lshl2_add_u32 s40, s40, s14', 's_lshl_b32 s40, s40, 9', 's_add_u32 s40, s40, %d' % FLAGF_OFF,
             's_lshl_b32 s32, s6, 7', 's_add_u32 s41, s40, s32',
             's_lshl_b32 s32, s7, 6', 's_lshl4_add_u32 s32, s6, s32', 's_mul_i32 s42, s32, 1792', 's_mul_i32 s32, s5, 896', 's_add_u32 s42, s42, s32',
             's_lshl_b32 s32, s38, 6', 's_add_u32 s42, s42, s32']
    run_phase(mfs, 0, r0 + r1b, pre=8, per=2, maxout=14, fill=cv1 + [(t, 20) for t in setup], nfill=2)
    lstamp(comp_st, CV)
    srd(a, 56, 28, 8 * 64 * 1792)
    a('s_cmp_ge_u32 s38, 14')
    a('s_cbranch_scc1 L_fin')
    PK = 128
    a('s_nop 1')
    for qt in range(4):
        for nt in range(2):
            acc = OUT + 4 * (nt * 4 + qt)
            a('v_cvt_pk_bf16_f32 v%d, v%d, v%d' % (PK + 4 * qt + 2 * nt, acc, acc + 1))
            a('v_cvt_pk_bf16_f32 v%d, v%d, v%d' % (PK + 4 * qt + 2 * nt + 1, acc + 2, acc + 3))
    a('v_mov_b32 v4, s41')
    for qt in range(4):
        a('v_permlane16_swap_b32 v%d, v%d' % (PK + 4 * qt, PK + 4 * qt + 2))
        a('v_permlane16_swap_b32 v%d, v%d' % (PK + 4 * qt + 1, PK + 4 * qt + 3))
    for qt in range(4):
        a('buffer_store_dwordx4 v[%d:%d], v23, s[52:55], s36 offen sc1' % (PK + 4 * qt, PK + 4 * qt + 3))
        if qt < 3: a('s_add_u32 s36, s36, 16384')
    a('v_lshlrev_b32 v5, 7, v2')
    a('v_add_u32 v5, s40, v5')
    a('s_waitcnt vmcnt(0)')
    lstamp(comp_st, CV)
    a.label('L_tn')
    a('s_or_b32 s32, s72, s73')
    a('s_cmp_lg_u32 s32, 0')
    a('s_cbranch_scc1 L_tnok')
    a('s_sleep 4')
    a('v_mov_b32 v6, 0')
    a('global_load_dwordx2 v[10:11], v6, s[30:31] sc1')
    a('s_waitcnt vmcnt(0)')
    a('v_readfirstlane_b32 s72, v10')
    a('v_readfirstlane_b32 s73, v11')
    a('s_branch L_tn')
    a.label('L_tnok')
    a('v_mov_b32 v10, s72'); a('v_mov_b32 v11, s73')
    a('s_mov_b64 exec, 1')
    a('buffer_store_dwordx2 v[10:11], v4, s[52:55], 0 offen sc1')
    a('s_mov_b64 exec, 15')
    a.label('L_tpoll')
    a('buffer_load_dwordx2 v[8:9], v5, s[52:55], 0 offen sc1')
    a('s_waitcnt vmcnt(0)')
    a('v_cmp_ne_u64 vcc, v[10:11], v[8:9]')
    a('s_cbranch_vccz L_tpok')
    a('s_sleep %d' % cfg.poll_sleep)
    a('s_branch L_tpoll')
    a.label('L_tpok')
    a('s_mov_b64 exec, -1')
    lstamp(comp_st, CV)
    for t in range(4):
        a('buffer_load_dwordx4 v[%d:%d], v23, s[52:55], s37 offen sc1' % (64 + 4 * t, 67 + 4 * t))
        if t < 3: a('s_add_u32 s37, s37, 4096')
    for t in range(4):
        a('s_waitcnt vmcnt(%d)' % (3 - t))
        for d in range(4):
            r = 64 + 4 * t + d
            if t == 0:
                a('v_lshlrev_b32 v%d, 16, v%d' % (8 + 2 * d, r))
                a('v_and_b32 v%d, 0xffff0000, v%d' % (9 + 2 * d, r))
            else:
                a('v_lshlrev_b32 v6, 16, v%d' % r)
                a('v_and_b32 v7, 0xffff0000, v%d' % r)
                a('v_add_f32 v%d, v%d, v6' % (8 + 2 * d, 8 + 2 * d))
                a('v_add_f32 v%d, v%d, v7' % (9 + 2 * d, 9 + 2 * d))
    for d in range(4): a('v_cvt_pk_bf16_f32 v%d, v%d, v%d' % (16 + d, 8 + 2 * d, 9 + 2 * d))
    a('buffer_store_dwordx4 v[16:19], v24, s[56:59], s42 offen')
    a.label('L_fin')
    n_comp = nst[0]
    def dump(rv, extra_stamp):
        a('s_waitcnt vmcnt(0)')
        a('s_memrealtime s[76:77]')
        a('s_waitcnt lgkmcnt(0)')
        a('v_writelane_b32 v%d, s76, %d' % (rv, extra_stamp))
        a('s_add_u32 s26, s26, %d' % (STAMP_OFF + (1 << 20)))
        a('s_addc_u32 s27, s27, 0')
        a('s_lshl_b32 s3, s2, 8')
        a('v_lshlrev_b32 v14, 2, v2')
        a('v_add_u32 v14, s3, v14')
        a('global_store_dword v14, v%d, s[26:27]' % rv)
    if comp_st:
        a('s_cmp_lg_u32 s14, %d' % cfg.lst)
        a('s_cbranch_scc1 L_done')
        dump(CV, n_comp)
        gen_main.nstamps = n_comp + 1
    a('s_endpgm')

    a.label('L_loader')
    a.inloader = True
    nst[0] = 1
    a('s_sub_u32 s14, s14, 4')
    a('v_lshrrev_b32 v3, 5, v2')
    a('v_and_b32 v4, 31, v2')
    a('v_lshrrev_b32 v4, 1, v4')
    a('v_and_b32 v5, 1, v2')
    a('v_lshlrev_b32 v5, 4, v5')
    a('v_lshrrev_b32 v6, 4, v2')
    a('s_and_b32 s32, s14, 1')
    a('s_lshl_b32 s33, s32, 2')
    a('v_add_u32 v6, s33, v6')
    a('v_and_b32 v7, 7, v2')
    a('v_xor_b32 v6, v6, v7')
    a('v_lshlrev_b32 v6, 4, v6')
    a('v_lshrrev_b32 v7, 3, v2')
    a('v_mul_u32_u24 v9, 896, v7')
    a('v_add_u32 v11, v6, v9')
    a('v_lshlrev_b32 v9, 9, v7')
    a('v_add_u32 v14, v6, v9')
    a('s_lshl_b32 s33, s32, 1')
    a('v_add_u32 v6, s33, v3')
    a('v_xor_b32 v6, v6, v4')
    a('v_lshlrev_b32 v6, 5, v6')
    a('v_lshlrev_b32 v7, 13, v3')
    a('v_add_u32 v6, v6, v7')
    a('v_add_u32 v10, v6, v5')
    a('v_xor_b32 v8, 128, v10')
    a('s_mul_i32 s56, s7, 57344')
    a('s_mul_i32 s32, s14, 7168')
    a('s_add_u32 s56, s56, s32')
    a('s_lshl_b32 s57, s14, 10')
    a('s_lshl_b32 s58, s9, 9')
    a('s_lshl_b32 s33, s14, 14')
    a('s_add_u32 s58, s58, s33')
    if cfg.rot:
        a('s_cmp_eq_u32 s7, 7'); a('s_cselect_b32 s90, 0, s7')
        if cfg.first0:
            a('s_sub_u32 s96, s7, 6'); a('s_cmp_ge_u32 s7, 6'); a('s_cselect_b32 s96, s96, s7'); a('s_add_u32 s96, s96, 1')
            a('s_mov_b32 s90, 0')
        a('s_lshr_b32 s94, s7, 2'); a('s_and_b32 s95, s7, 3')
    else:
        a('s_mov_b32 s90, 0'); a('s_mov_b32 s94, 0'); a('s_mov_b32 s95, 0')
    a('v_lshlrev_b32 v27, 7, v2')
    a('s_waitcnt lgkmcnt(0)')
    if load_st: a('v_writelane_b32 v%d, s78, 0' % LV)
    srd(a, 40, 22, 3670016); srd(a, 36, 16, 458752)
    ops = []; known = [-1]
    def vm(tag, txt):
        a(txt); ops.append(tag)
    def wait_for(tags):
        idxs = [i for i, t in enumerate(ops) if t in tags]
        if not idxs: return
        m = max(idxs)
        if m <= known[0]: return
        n = len(ops) - 1 - m
        assert n <= 63, n
        a('s_waitcnt vmcnt(%d)' % n); known[0] = m
    def dma(tag, vreg, srdn, gsg, gimm, limm):
        a('s_add_u32 m0, s57, %d' % limm)
        a('s_add_u32 s32, %s, %d' % (gsg, gimm))
        vm(tag, 'buffer_load_dwordx4 %s, s[%d:%d], s32 offen lds' % (vreg, srdn, srdn + 3))
    def item_pieces(it):
        sl = SLOT_OF[it]
        L = []; pre = []; post = []
        if it[0] == 'W':
            pre = ['s_lshl_b32 s92, s90, 19', 's_add_u32 s92, s92, s58', 's_lshl_b32 s93, s90, 7', 's_add_u32 s93, s93, s56']
            for t in range(8):
                L.append(('v10' if t % 2 == 0 else 'v8', 40, 's92', t * 65536, sl + t * 4096))
                if t == 1: L.append(('v11', 36, 's93', 0, sl + 32768))
                if t == 3: L.append(('v11', 36, 's93', 4 * 7168, sl + 32768 + 4096))
            if cfg.first0 and cfg.rot:
                if it == 'W0': pre += ['s_mov_b32 s90, s96']
                else: pre += ['s_add_u32 s90, s90, 1', 's_cmp_ge_u32 s90, 7', 's_cselect_b32 s90, 1, s90']
            else:
                pre += ['s_add_u32 s90, s90, 1', 's_cmp_ge_u32 s90, 7', 's_cselect_b32 s90, 0, s90']
        elif it == 'K':
            for t in range(8): L.append(('v13' if t & 1 else 'v12', 44, 's60', t * 4096, sl + t * 4096))
        else:
            n = int(it[1])
            pre = ['s_add_u32 s91, s95, %d' % n, 's_and_b32 s91, s91, 3', 's_xor_b32 s89, s94, %d' % (n >> 2),
                   's_mul_i32 s92, s89, %d' % (2 * 229376), 's_mul_i32 s88, s91, 57344', 's_add_u32 s92, s92, s88', 's_add_u32 s92, s92, s59',
                   's_lshl_b32 s93, s89, 15', 's_lshl_b32 s88, s91, 7', 's_add_u32 s93, s93, s88', 's_add_u32 s93, s93, s61']
            for t in range(8):
                L.append(('v15', 52, 's92', (t >> 2) * 229376 + (t & 3) * 16 * 896, sl + t * 4096))
                if t == 1: L.append(('v14', 48, 's93', 0, sl + 32768))
                if t == 3: L.append(('v14', 48, 's93', 4 * 4096, sl + 32768 + 4096))
        return pre, L
    LOADS = ['W0','W1','W2','W3','W4','W5','W6','K','B0','B1','B2','B3','B4','B5','B6','B7']
    stream = []
    endidx = {}
    for it in LOADS:
        pre, L = item_pieces(it)
        for k, pc in enumerate(L): stream.append((it, k, pre if k == 0 else [], pc))
        endidx[it] = len(stream)
    FREE = dict(W0=-1, W1=-1, W2=-1, W3=-1, W4=1, W5=2, W6=3, K=4, B0=5, B1=7, B2=8, B3=9, B4=8, B5=10, B6=11, B7=12)
    pos = [0]
    hooks = {}
    def issue_upto(limit, e):
        while pos[0] < min(limit, len(stream)):
            it, k, pre, (vr, sr, gs, gi, lo) = stream[pos[0]]
            if FREE[it] > e: break
            for t in pre: a(t)
            dma(it, vr, sr, gs, gi, lo)
            pos[0] += 1
            if pos[0] == endidx[it] and it in hooks: hooks[it]()
    def touch(srdn, soff, nl):
        a('s_mov_b64 s[34:35], exec')
        a('s_mov_b32 exec_lo, 0x%x' % ((1 << nl) - 1)); a('s_mov_b32 exec_hi, 0')
        vm('T', 'buffer_load_dword v31, v27, s[%d:%d], %s offen' % (srdn, srdn + 3, soff))
        a('s_mov_b64 exec, s[34:35]')
    def xt():
        a('s_mul_i32 s32, s8, 112'); a('s_mul_i32 s33, s14, 28'); a('s_add_u32 s32, s32, s33'); a('s_lshl_b32 s32, s32, 7')
        a('s_mul_i32 s33, s7, 57344'); a('s_add_u32 s33, s32, s33')
        touch(36, 's33', 28)
    def vt():
        a('s_lshl_b32 s32, s8, 14'); a('s_add_u32 s33, s62, s32'); a('s_lshl_b32 s32, s14, 12'); a('s_add_u32 s33, s33, s32')
        touch(48, 's33', 32)
    if cfg.xtouch: hooks['W0'] = xt
    if cfg.vtouch: hooks['B0'] = vt
    issue_upto(endidx['W0'], -1)
    srd(a, 44, 18, 2097152); srd(a, 48, 20, 2097152); srd(a, 52, 24, 3670016)
    srd(a, 64, 26, WS_SRD_BYTES)
    a('s_lshl3_add_u32 s60, s7, s10')
    a('s_lshl_b32 s60, s60, 15')
    a('s_add_u32 s60, s60, s57')
    a('s_lshl_b32 s32, s6, 1')
    a('s_lshl3_add_u32 s61, s7, s32')
    a('s_lshl_b32 s61, s61, 15')
    a('s_mov_b32 s62, s61')
    a('s_lshl_b32 s32, s14, 12')
    a('s_add_u32 s61, s61, s32')
    a('s_mul_i32 s59, s6, %d' % (4 * 229376))
    a('s_lshl_b32 s32, s8, 8')
    a('s_add_u32 s59, s59, s32')
    a('s_mul_i32 s32, s14, 3584')
    a('s_add_u32 s59, s59, s32')
    a('s_lshl_b32 s32, s14, 1')
    a('v_add_u32 v6, s32, v3')
    a('v_and_b32 v7, 31, v2')
    a('v_xor_b32 v7, v7, v6')
    a('v_lshlrev_b32 v7, 4, v7')
    a('v_lshlrev_b32 v20, 9, v3')
    a('v_add_u32 v12, v7, v20')
    a('v_xor_b32 v13, 128, v12')
    a('v_lshrrev_b32 v6, 4, v2')
    a('s_lshr_b32 s32, s14, 1')
    a('s_lshl_b32 s32, s32, 2')
    a('v_add_u32 v7, s32, v6')
    a('v_and_b32 v20, 15, v2')
    a('v_lshrrev_b32 v20, 1, v20')
    a('v_xor_b32 v7, v7, v20')
    a('v_lshlrev_b32 v7, 5, v7')
    a('v_mul_u32_u24 v6, 896, v6')
    a('v_add_u32 v7, v7, v6')
    a('v_add_u32 v15, v7, v5')
    a('v_lshlrev_b32 v16, 4, v2')
    a('v_add_u32 v17, s57, v16')
    a('v_mov_b32 v22, 0')
    a('v_mov_b32 v24, 0'); a('v_mov_b32 v25, 0')
    a('s_lshl2_add_u32 s32, s15, s6')
    a('s_lshl_b32 s32, s32, 9')
    a('s_add_u32 s32, s32, %d' % FLAGP_OFF)
    a('s_add_u32 s68, s26, s32')
    a('s_addc_u32 s69, s27, 0')
    a('s_mov_b32 s72, 0'); a('s_mov_b32 s73, 0')
    issue_upto(endidx['W0'] + cfg.cap, -1)
    a('s_or_b32 s32, s2, s14')
    a('s_cmp_lg_u32 s32, 0')
    a('s_cbranch_scc1 L_nononce')
    a('s_memrealtime s[32:33]')
    a('s_waitcnt lgkmcnt(0)')
    a('s_or_b32 s32, s32, 1')
    a('v_mov_b32 v20, s32'); a('v_mov_b32 v21, s33')
    a('s_mov_b64 s[34:35], exec')
    a('s_mov_b64 exec, 1')
    a('global_store_dwordx2 v22, v[20:21], s[30:31] sc1')
    a('s_mov_b64 exec, s[34:35]')
    a.label('L_nononce')
    lstamp(load_st, LV)
    wait_for(['W0'])
    lstamp(load_st, LV)
    a('s_barrier')
    NEED = {1: ['W1'], 2: ['W2'], 3: ['W3'], 4: ['W4'], 5: ['W5'], 6: ['W6'] + (['K'] if cfg.kpre else []), 7: ['K'], 8: ['B0'], 9: ['B1'], 10: ['B2'], 11: ['B3'],
            12: ['B4'], 13: ['B5'], 14: ['B6'], 15: ['B7'], 16: []}
    lab = [0]
    def w3_only(fn):
        lab[0] += 1
        L = 'L_w3s_%d' % lab[0]
        a('s_cmp_lg_u32 s14, 3')
        a('s_cbranch_scc1 %s' % L)
        fn()
        a.label(L)
    def nonce_check():
        lab[0] += 1
        Lg = 'L_gn_%d' % lab[0]; Lh = 'L_hn_%d' % lab[0]
        a.label(Lg)
        a('v_readfirstlane_b32 s72, v24')
        a('v_readfirstlane_b32 s73, v25')
        a('s_or_b32 s32, s72, s73')
        a('s_cmp_lg_u32 s32, 0')
        a('s_cbranch_scc1 %s' % Lh)
        a('s_sleep 4')
        a('global_load_dwordx2 v[24:25], v22, s[30:31] sc1')
        a('s_waitcnt vmcnt(0)')
        a('s_branch %s' % Lg)
        a.label(Lh)
    def flag_write(off, idx_code):
        idx_code()
        a('s_lshl_b32 s32, s32, 7')
        a('s_add_u32 s32, s32, %d' % off)
        a('v_mov_b32 v26, s32')
        a('s_mov_b64 s[34:35], exec')
        a('s_mov_b64 exec, 1')
        a('buffer_store_dwordx2 v[24:25], v26, s[64:67], 0 offen sc1')
        a('s_mov_b64 exec, s[34:35]')
    def spoll_issue():
        for k in range(4): a('s_load_dwordx2 s[%d:%d], s[68:69], 0x%x glc' % (80 + 2 * k, 81 + 2 * k, 128 * k))
    def spoll_check():
        lab[0] += 1
        Lp = 'L_sp_%d' % lab[0]; Lo = 'L_so_%d' % lab[0]; Lr = 'L_sr_%d' % lab[0]
        a.label(Lp)
        a('s_waitcnt lgkmcnt(0)')
        for k in range(4):
            a('s_cmp_eq_u64 s[%d:%d], s[72:73]' % (80 + 2 * k, 81 + 2 * k))
            a('s_cbranch_scc0 %s' % Lr)
        a('s_branch %s' % Lo)
        a.label(Lr)
        a('s_sleep 2')
        spoll_issue()
        a('s_branch %s' % Lp)
        a.label(Lo)
    def idxP_own(): a('s_lshl2_add_u32 s32, s15, s6'); a('s_lshl2_add_u32 s32, s32, s8')
    for e in range(16):
        nd = NEED[e + 1]
        last = max([endidx[x] for x in nd]) if nd else len(stream)
        issue_upto(last + cfg.capx.get(e, cfg.cap), e)
        if e == 6:
            vm('N', 'global_load_dwordx2 v[24:25], v22, s[30:31]')
        if e == 11:
            wait_for(['N'])
            def fw():
                nonce_check(); flag_write(FLAGP_OFF, idxP_own)
            w3_only(fw)
        if e == 12:
            pass
        if e == 14:
            a('s_lshl2_add_u32 s33, s15, s6')
            a('s_lshl_b32 s33, s33, 15')
            a('s_add_u32 s33, s33, s57')
            for t in range(8):
                a('s_add_u32 s32, s33, %d' % (P_OFF + t * 4096))
                vm('Pv', 'buffer_load_dwordx4 v[%d:%d], v16, s[64:67], s32 offen sc1' % (32 + 4 * t, 35 + 4 * t))
        if e == 15:
            wait_for(['Pv'])
            a('v_add_u32 v18, %d, v17' % PBUF)
            for t in range(8):
                a('ds_write_b128 v18, v[%d:%d] offset:%d' % (32 + 4 * t, 35 + 4 * t, t * 4096))
            a('s_waitcnt lgkmcnt(0)')
        wait_for(NEED[e + 1])
        if e == 12: w3_only(spoll_issue)
        if e == 13: w3_only(spoll_check)
        a('s_barrier')
        lstamp(load_st, LV)
    n_load = nst[0]
    if load_st:
        a('s_cmp_lg_u32 s14, %d' % (cfg.lst - 4))
        a('s_cbranch_scc1 L_done')
        dump(LV, n_load)
        gen_main.nstamps = n_load + 1
    a.label('L_done')
    a('s_endpgm')
    return a.text()

def build(cfg):
    K = NAME + '_kernel'
    return kernel_file([(K, gen_main(cfg), 256, 102, 256)], [(K, (256, 1, 1), (512, 1, 1), LDS_BYTES)])

def mk(name, **kw):
    c = Cfg()
    for k, v in kw.items(): setattr(c, k, v)
    open(name, 'w').write(build(c))
    if c.lst is not None: print(name, 'nstamps', gen_main.nstamps)

if __name__ == '__main__':
    mk('v11.s')
    mk('v11_c.s', lst=0)
    mk('v11_l.s', lst=4)
    mk('v11_c_nf0.s', lst=0, first0=False)
    mk('v11_c_cap16.s', lst=0, cap=16)
    mk('v11_c_capx.s', lst=0, capx={5: 30, 6: 30, 7: 30, 8: 30})
```

```python
import sys
from asmlib import *

SLOT = 40960
SL = [0, SLOT, 2 * SLOT, 3 * SLOT]
LDS_BYTES = 163840
P_OFF = 0
F_OFF = 2 << 20
FLAGP_OFF = 12 << 20
FLAGF_OFF = (12 << 20) + 1024 * 128
WS_SRD_BYTES = (12 << 20) + 2048 * 128
STAMP_OFF = 128 << 20
SLOT_IDX = dict(W0=0, W1=1, W2=2, W3=3, W4=0, W5=1, W6=2, K=3, B0=0, XQ=1, B1=2, B2=3, B3=1, B4=0, B5=2, B6=3, B7=1, P=0)
SLOT_OF = {k: SL[v] for k, v in SLOT_IDX.items()}
XBUF = SLOT_OF['XQ']
PBUF = SLOT_OF['P']

class Cfg:
    lst = None
    noload = False
    nocomp = False
    prio = 2
    poll_sleep = 1
    rot = True
    xtouch = True
    vtouch = True
    kpre = True
    first0 = True
    cap = 12
    capx = {}
    nov = False
    wolin = False

def srd(a, d, src, size):
    a('s_mov_b32 s%d, s%d' % (d, src))
    a('s_and_b32 s%d, s%d, 0xffff' % (d + 1, src + 1))
    a('s_mov_b32 s%d, %d' % (d + 2, size))
    a('s_mov_b32 s%d, 0x20000' % (d + 3))

def gen_main(cfg):
    class A2(Asm):
        inloader = False; intail = False
        def __call__(self, s=''):
            t = s.strip()
            if cfg.noload and t.startswith('buffer_load') and self.inloader and ' lds' in t: return
            if cfg.nocomp and not self.inloader and not self.intail and (t.startswith('ds_read') or t.startswith('v_mfma') or t.startswith('ds_write')): return
            Asm.__call__(self, s)
    a = A2()
    nst = [0]
    def lstamp(role_ok, vreg):
        if cfg.lst is None or not role_ok: return
        n = nst[0]; nst[0] += 1
        a('s_memrealtime s[76:77]')
        a('s_waitcnt lgkmcnt(0)')
        a('v_writelane_b32 v%d, s76, %d' % (vreg, n))
    comp_st = cfg.lst is not None and cfg.lst < 4
    load_st = cfg.lst is not None and cfg.lst >= 4
    CV = 1; LV = 30

    def run_phase(mfs, old_n, reads_new, events=None, fill=None, per=1, maxout=15, pre=0, done0=-1, nfill=1):
        issued = old_n; done = done0
        allr = [None] * old_n + list(reads_new)
        fill_ = list(fill or [])
        ev = events or {}
        k = 0
        while k < pre and issued < len(allr) and allr[issued][1] < 0 and (issued - 1 - done) < maxout:
            a(allr[issued][0]); issued += 1; k += 1
        for mi, (txt, need) in enumerate(mfs):
            while need >= issued:
                assert allr[issued][1] <= mi - 1, (mi, issued)
                if (issued - 1 - done) >= maxout:
                    a('s_waitcnt lgkmcnt(%d)' % (maxout - 1)); done = issued - maxout
                a(allr[issued][0]); issued += 1
            if need > done:
                a('s_waitcnt lgkmcnt(%d)' % (issued - 1 - need)); done = need
            a(txt)
            for e in ev.get(mi, []): a(e)
            k = 0
            while k < per and issued < len(allr) and allr[issued][1] <= mi and (issued - 1 - done) < maxout:
                a(allr[issued][0]); issued += 1; k += 1
            k = 0
            while k < nfill and fill_ and fill_[0][1] <= mi:
                a(fill_.pop(0)[0]); k += 1
        while issued < len(allr):
            if (issued - 1 - done) >= maxout:
                a('s_waitcnt lgkmcnt(%d)' % (maxout - 1)); done = issued - maxout
            a(allr[issued][0]); issued += 1
        for f in fill_: a(f[0])
        return issued - 1 - done

    a('s_cmp_ge_u32 s2, 256')
    a('s_cbranch_scc1 L_done')
    a('s_and_b32 s3, s2, 7')
    a('s_lshr_b32 s5, s3, 2')
    a('s_mul_i32 s11, s5, 40')
    a('s_add_u32 s12, s0, s11')
    a('s_addc_u32 s13, s1, 0')
    a('s_load_dwordx8 s[16:23], s[12:13], 0')
    a('s_load_dwordx2 s[24:25], s[12:13], 32')
    a('s_load_dwordx4 s[28:31], s[0:1], 80')
    a('s_load_dwordx2 s[26:27], s[0:1], 96')
    if cfg.lst is not None:
        a('s_memrealtime s[78:79]')
    a('v_lshrrev_b32 v1, 6, v0')
    a('v_and_b32 v2, 63, v0')
    a('v_readfirstlane_b32 s14, v1')
    a('s_lshr_b32 s4, s2, 3')
    a('s_and_b32 s6, s3, 3')
    a('s_lshr_b32 s7, s4, 2')
    a('s_and_b32 s8, s4, 3')
    a('s_lshl2_add_u32 s9, s6, s8')
    a('s_lshr_b32 s10, s9, 1')
    a('s_lshl3_add_u32 s15, s5, s7')
    a('s_cmp_ge_u32 s14, 4')
    a('s_cbranch_scc1 L_loader')

    if cfg.prio: a('s_setprio %d' % cfg.prio)
    a('v_and_b32 v3, 15, v2')
    a('v_lshrrev_b32 v4, 4, v2')
    a('v_lshrrev_b32 v5, 2, v3')
    a('v_and_b32 v6, 3, v2')
    a('v_lshlrev_b32 v7, 3, v4')
    a('v_add_u32 v7, v7, v5')
    a('v_lshlrev_b32 v9, 9, v7')
    a('v_lshlrev_b32 v8, 3, v6')
    a('v_add_u32 v9, v9, v8')
    a('v_xor_b32 v8, s14, v4')
    a('v_and_b32 v8, 1, v8')
    a('v_lshlrev_b32 v8, 2, v8')
    a('s_lshr_b32 s32, s14, 1')
    a('s_lshl_b32 s32, s32, 3')
    a('v_add_u32 v8, s32, v8')
    a('v_add_u32 v8, v8, v5')
    a('v_lshlrev_b32 v8, 5, v8')
    a('v_add_u32 v10, v9, v8')
    for mt in range(1, 4):
        a('v_xor_b32 v%d, %d, v10' % (10 + mt, 32 * mt))
    a('v_lshlrev_b32 v9, 8, v7')
    a('v_and_b32 v8, 1, v4')
    a('v_lshlrev_b32 v8, 2, v8')
    a('v_add_u32 v8, v8, v5')
    a('s_lshl_b32 s32, s14, 1')
    a('v_xor_b32 v8, s32, v8')
    a('v_lshlrev_b32 v8, 5, v8')
    a('v_add_u32 v9, v9, v8')
    a('v_lshlrev_b32 v8, 3, v6')
    a('v_add_u32 v21, v9, v8')
    a('v_xor_b32 v22, 32, v21')
    a('v_lshrrev_b32 v7, 1, v3')
    a('v_xor_b32 v7, v7, v4')
    a('v_lshlrev_b32 v7, 4, v7')
    a('v_lshlrev_b32 v8, 7, v3')
    a('v_add_u32 v7, v7, v8')
    a('v_add_u32 v14, 32768, v7')
    a('v_xor_b32 v15, 64, v14')
    a('v_xor_b32 v7, v3, v4')
    a('v_lshlrev_b32 v7, 4, v7')
    a('v_lshlrev_b32 v8, 9, v3')
    a('v_add_u32 v16, v7, v8')
    for j in range(1, 4):
        a('v_xor_b32 v%d, %d, v16' % (16 + j, 64 * j))
    a('v_lshrrev_b32 v7, 1, v4')
    a('s_lshl_b32 s32, s14, 3')
    a('v_or_b32 v7, s32, v7')
    a('v_xor_b32 v7, v7, v3')
    a('v_lshlrev_b32 v7, 4, v7')
    a('v_lshlrev_b32 v8, 9, v3')
    a('v_add_u32 v7, v7, v8')
    a('v_and_b32 v8, 1, v4')
    a('v_lshlrev_b32 v8, 3, v8')
    a('v_add_u32 v7, v7, v8')
    a('v_add_u32 v20, %d, v7' % XBUF)
    a('v_xor_b32 v3, 32, v20'); a('v_xor_b32 v5, 64, v20'); a('v_xor_b32 v6, 96, v20')
    a('v_lshlrev_b32 v23, 4, v2')
    a('v_and_b32 v7, 15, v2')
    a('v_mul_u32_u24 v7, 1792, v7')
    a('v_and_b32 v8, 1, v4')
    a('v_lshlrev_b32 v8, 5, v8')
    a('v_add_u32 v7, v7, v8')
    a('v_lshrrev_b32 v8, 1, v4')
    a('v_lshlrev_b32 v8, 4, v8')
    a('v_add_u32 v24, v7, v8')
    ACC0 = 64; ACC1 = 192
    for r in range(64):
        a('v_mov_b32 v%d, 0' % (ACC0 + r))
    a('s_mov_b32 s32, %d' % SLOT_OF['K'])
    for j in range(4): a('v_add_u32 v%d, s32, v%d' % (56 + j, 16 + j))
    a('s_mov_b32 s46, 0x3db8aa3b')
    a('s_waitcnt lgkmcnt(0)')
    if comp_st:
        a('v_writelane_b32 v%d, s78, 0' % CV); nst[0] = 1
    srd(a, 52, 26, WS_SRD_BYTES)
    a('s_lshl2_add_u32 s33, s15, s6')
    a('s_lshl2_add_u32 s33, s33, s8')
    a('s_lshl_b32 s33, s33, 13')
    a('s_lshl_b32 s32, s14, 11')
    a('s_add_u32 s33, s33, s32')
    a('s_lshl2_add_u32 s49, s15, s6')
    a('s_lshl2_add_u32 s49, s49, s14')
    a('s_lshl2_add_u32 s49, s49, s8')
    a('s_lshl_b32 s49, s49, 7')
    a('s_add_u32 s49, s49, %d' % FLAGP_OFF)
    def tr_reads(kind, s, m, after):
        base = (128 if s == 0 else 160) + 4 * m
        if kind == 'A': reg, off, d2 = 26 + m, s * 16384, 2048
        else: reg, off, d2 = 26 + (m & 1), (m >> 1) * 16384 + s * 8192, 1024
        return [('ds_read_b64_tr_b16 v[%d:%d], v%d offset:%d' % (base, base + 1, reg, off), after),
                ('ds_read_b64_tr_b16 v[%d:%d], v%d offset:%d' % (base + 2, base + 3, reg, off + d2), after)]
    def n_read(s, q, after):
        base = (144 if s == 0 else 176) + 4 * q
        return [('ds_read_b128 v[%d:%d], v%d offset:%d' % (base, base + 3, 30 + s, q * 2048), after)]
    def set_reads(kind, s, after):
        reads = []; idx = {}
        reads += tr_reads(kind, s, 0, after); idx[('T', 0)] = len(reads) - 1
        for q in range(4):
            reads += n_read(s, q, after); idx[('N', q)] = len(reads) - 1
        for m in range(1, 4):
            reads += tr_reads(kind, s, m, after); idx[('T', m)] = len(reads) - 1
        return reads, idx
    def mm(kind, s, m, q, accb):
        tb = (128 if s == 0 else 160) + 4 * m
        nb = (144 if s == 0 else 176) + 4 * q
        acc = accb + 4 * (m * 4 + q)
        A, B = (tb, nb) if kind == 'A' else (nb, tb)
        return 'v_mfma_f32_16x16x32_bf16 v[%d:%d], v[%d:%d], v[%d:%d], v[%d:%d]' % (acc, acc + 3, A, A + 3, B, B + 3, acc, acc + 3)
    def addr_upd(kind, slot):
        if kind == 'A':
            return ['v_add_u32 v%d, %s, v%d' % (26 + i, slot, 10 + i) for i in range(4)] + ['v_add_u32 v%d, %s, v%d' % (30 + i, slot, 14 + i) for i in range(2)]
        return ['v_add_u32 v%d, %s, v%d' % (26 + i, slot, 21 + i) for i in range(2)] + ['v_add_u32 v%d, %s, v%d' % (30 + i, slot, 14 + i) for i in range(2)]
    _, IDX = set_reads('A', 0, -1)
    def needs(m, q): return max(IDX[('T', m)], IDX[('N', q)])
    adv = ['s_add_u32 s34, s34, %d' % SLOT, 's_cmp_ge_u32 s34, %d' % (4 * SLOT), 's_cselect_b32 s34, 0, s34', 's_add_u32 s35, s35, 1']
    a('s_mov_b32 s34, 0')
    a('s_mov_b32 s35, 0')
    for t in addr_upd('A', 's34'): a(t)
    a('s_barrier')
    lstamp(comp_st, CV)
    for t, _ in set_reads('A', 0, -1)[0]: a(t)
    a.label('L_a1')
    mq = [(mm('A', 0, m, q, ACC0), needs(m, q)) for m in range(4) for q in range(4)]
    run_phase(mq, 12, set_reads('A', 1, -1)[0], fill=[(t, 8) for t in adv])
    mp = [(mm('A', 1, m, q, ACC0), needs(m, q)) for m in range(4) for q in range(4)]
    mp3 = list(mp); mp3[3] = (mp[3][0], 11)
    a('s_cmp_ge_u32 s35, 7')
    a('s_cbranch_scc1 L_a1_last')
    run_phase(mp3, 12, set_reads('A', 0, 3)[0], events={3: addr_upd('A', 's34') + ['s_barrier']})
    a('s_branch L_a1')
    a.label('L_a1_last')
    QF = 160; KF = 192; SACC = 32
    def kread(s, kt, after):
        n = s * 4 + kt
        r = KF + 4 * (n % 16)
        return ('ds_read_b128 v[%d:%d], v%d offset:%d' % (r, r + 3, 56 + (s & 3), kt * 8192 + (s >> 2) * 256), after)
    lds_ops = []
    if cfg.kpre:
        for s in range(4):
            for kt in range(4): lds_ops.append(kread(s, kt, -1))
    qaddr = [20, 3, 5, 6]
    cvq = []
    for mt in range(4):
        for qt in range(4):
            tl = mt * 4 + qt
            acc = ACC0 + 4 * tl; t = 128 + 2 * tl
            cvq.append(('v_cvt_pk_bf16_f32 v%d, v%d, v%d' % (t, acc, acc + 1), tl + 5))
            cvq.append(('v_cvt_pk_bf16_f32 v%d, v%d, v%d' % (t + 1, acc + 2, acc + 3), tl + 5))
    early_cv = [c for c in cvq if c[1] <= 15]
    late_cv = [c for c in cvq if c[1] > 15]
    run_phase(mp, 12, lds_ops, per=1, fill=early_cv, nfill=2)
    lstamp(comp_st, CV)
    def qwrite(tl):
        mt, qt = tl >> 2, tl & 3
        a('ds_write_b64 v%d, v[%d:%d] offset:%d' % (qaddr[mt], 128 + 2 * tl, 129 + 2 * tl, qt * 8192))
    for tl in range(11): qwrite(tl)
    for c in late_cv: a(c[0])
    for tl in range(11, 16): qwrite(tl)
    a('s_lshl_b32 s32, s14, 13')
    a('s_add_u32 s32, s32, %d' % XBUF)
    for j in range(4): a('v_add_u32 v%d, s32, v%d' % (26 + j, 16 + j))
    a('v_mov_b32 v62, 0')
    a('global_load_dwordx2 v[62:63], v62, s[30:31]')
    a('s_waitcnt lgkmcnt(0)')
    a('s_barrier')
    lstamp(comp_st, CV)
    reads = []; mf = []; idx = {}
    npre = 16 if cfg.kpre else 0
    order = []
    if cfg.kpre:
        for s in range(4): order.append(('Q', s))
        for s in range(4, 8):
            order.append(('Q', s))
            for kt in range(4): order.append(('K', s, kt))
    else:
        for s in range(8):
            order.append(('Q', s))
            for kt in range(4): order.append(('K', s, kt))
    for o in order:
        if o[0] == 'Q':
            s = o[1]
            reads.append(('ds_read_b128 v[%d:%d], v%d offset:%d' % (QF + 4 * s, QF + 4 * s + 3, 26 + (s & 3), (s >> 2) * 256), -1))
        else:
            s, kt = o[1], o[2]
            reads.append(kread(s, kt, s * 4 + kt - 16))
        idx[o] = len(reads) - 1
    for s in range(8):
        for kt in range(4):
            r = KF + 4 * ((s * 4 + kt) % 16)
            acc = SACC + 4 * kt
            c = 'v[%d:%d]' % (acc, acc + 3) if s else '0'
            need = max(idx[('Q', s)], idx.get(('K', s, kt), -1))
            mf.append(('v_mfma_f32_16x16x32_bf16 v[%d:%d], v[%d:%d], v[%d:%d], %s' % (acc, acc + 3, r, r + 3, QF + 4 * s, QF + 4 * s + 3, c), need))
    zero0 = [('v_mov_b32 v%d, 0' % (ACC0 + r), 0) for r in range(64)]
    run_phase(mf, 0, reads, pre=4, per=2, maxout=14, fill=zero0, nfill=2)
    for t in addr_upd('B', SLOT_OF['B0']): a(t)
    a('s_barrier')
    lstamp(comp_st, CV)
    for t, _ in set_reads('B', 0, -1)[0]: a(t)
    S = SACC
    sm = []
    sm += ['v_max3_f32 v48, v%d, v%d, v%d' % (S, S + 1, S + 2), 'v_max3_f32 v49, v%d, v%d, v%d' % (S + 3, S + 4, S + 5),
           'v_max3_f32 v50, v%d, v%d, v%d' % (S + 6, S + 7, S + 8), 'v_max3_f32 v51, v%d, v%d, v%d' % (S + 9, S + 10, S + 11),
           'v_max3_f32 v48, v48, v%d, v%d' % (S + 12, S + 13), 'v_max3_f32 v49, v49, v%d, v%d' % (S + 14, S + 15),
           'v_max3_f32 v48, v48, v50, v51', 'v_max_f32 v48, v48, v49',
           'v_mov_b32 v49, v48', 's_nop 1', 'v_permlane16_swap_b32 v48, v49', 'v_max_f32 v48, v48, v49',
           'v_mov_b32 v49, v48', 's_nop 1', 'v_permlane32_swap_b32 v48, v49', 'v_max_f32 v48, v48, v49', 'v_mul_f32 v48, s46, v48']
    sm += ['v_fma_f32 v%d, v%d, s46, -v48' % (S + r, S + r) for r in range(16)]
    sm += ['v_exp_f32 v%d, v%d' % (S + r, S + r) for r in range(16)]
    sm += ['v_add_f32 v50, v%d, v%d' % (S, S + 1), 'v_add_f32 v51, v%d, v%d' % (S + 2, S + 3)]
    for r in range(4, 16, 2):
        sm += ['v_add_f32 v50, v50, v%d' % (S + r), 'v_add_f32 v51, v51, v%d' % (S + 1 + r)]
    sm += ['v_add_f32 v50, v50, v51', 'v_mov_b32 v49, v50', 's_nop 1', 'v_permlane16_swap_b32 v50, v49', 'v_add_f32 v50, v50, v49',
           'v_mov_b32 v49, v50', 's_nop 1', 'v_permlane32_swap_b32 v50, v49', 'v_add_f32 v50, v50, v49', 'v_rcp_f32 v50, v50', 's_nop 0']
    sm += ['v_mul_f32 v%d, v%d, v50' % (S + r, S + r) for r in range(16)]
    for s in range(2):
        for half in range(2):
            t = S + 4 * (2 * s + half)
            sm += ['v_cvt_pk_bf16_f32 v%d, v%d, v%d' % (52 + 4 * s + 2 * half, t, t + 1), 'v_cvt_pk_bf16_f32 v%d, v%d, v%d' % (52 + 4 * s + 2 * half + 1, t + 2, t + 3)]
    sm += ['buffer_store_dwordx4 v[52:55], v23, s[52:55], s33 offen sc1', 'buffer_store_dwordx4 v[56:59], v23, s[52:55], s33 offen offset:1024 sc1']
    smq = [(t, 0) for t in sm[:64]]
    smp = [(t, 0) for t in sm[64:]]
    VW0 = 32; VW1 = 96; OUT = 64
    def vw_cvt(accb, dst, after):
        f = []
        for j in range(4):
            for sp in range(2):
                for half in range(2):
                    t = accb + 4 * (4 * j + 2 * sp + half)
                    d = dst + 4 * (2 * j + sp) + 2 * half
                    f.append(('v_cvt_pk_bf16_f32 v%d, v%d, v%d' % (d, t, t + 1), after))
                    f.append(('v_cvt_pk_bf16_f32 v%d, v%d, v%d' % (d + 1, t + 2, t + 3), after))
        return f
    zero1 = [('v_mov_b32 v%d, 0' % (ACC1 + r), 0) for r in range(64)]
    for n in range(8):
        accb = ACC0 if n < 4 else ACC1
        fillq = []; fillp = []; nq = 1; npf = 1
        if n == 0: fillq = smq; fillp = smp; nq = 4; npf = 4
        if 1 <= n <= 3:
            z = zero1[22 * (n - 1): 22 * n]
            fillq = z[:14]; fillp = z[14:]
        if n == 4:
            cvs = vw_cvt(ACC0, VW0, 5)
            fillq = cvs[:11]; fillp = [(t, 0) for t, _ in cvs[11:24]]
        if n == 5:
            cvs = vw_cvt(ACC0, VW0, 0)
            fillq = cvs[24:]
        mq = [(mm('B', 0, m, q, accb), needs(m, q)) for m in range(4) for q in range(4)]
        run_phase(mq, 12, set_reads('B', 1, -1)[0], fill=fillq, nfill=nq)
        mp = [(mm('B', 1, m, q, accb), needs(m, q)) for m in range(4) for q in range(4)]
        mp[3] = (mp[3][0], 11)
        if n < 7:
            ev = addr_upd('B', SLOT_OF['B%d' % (n + 1)])
            evs = {3: ev + ['s_barrier']}
            if n == 1:
                evs[14] = ['s_waitcnt vmcnt(0)', 'v_readfirstlane_b32 s72, v62', 'v_readfirstlane_b32 s73, v63', 's_nop 0', 's_or_b32 s32, s72, s73',
                           's_cmp_lg_u32 s32, 0', 's_cbranch_scc1 L_pfok', 'L_pfr:', 's_sleep 4', 'v_mov_b32 v60, 0',
                           'global_load_dwordx2 v[62:63], v60, s[30:31] sc1', 's_waitcnt vmcnt(0)', 'v_readfirstlane_b32 s72, v62', 'v_readfirstlane_b32 s73, v63',
                           's_nop 0', 's_or_b32 s32, s72, s73', 's_cmp_eq_u32 s32, 0', 's_cbranch_scc1 L_pfr', 'L_pfok:', 'v_mov_b32 v60, s49',
                           's_mov_b64 exec, 1', 'buffer_store_dwordx2 v[62:63], v60, s[52:55], 0 offen sc1', 's_mov_b64 exec, -1', 's_nop 3']
            run_phase(mp, 12, set_reads('B', 0, 3)[0], events=evs, fill=fillp, nfill=npf)
        else:
            run_phase(mp, 12, [])
    lstamp(comp_st, CV)
    if cfg.rot: a('s_lshr_b32 s32, s7, 2')
    else: a('s_mov_b32 s32, 0')
    a('s_lshl_b32 s32, s32, 14')
    a('s_xor_b32 s39, s32, 16384')
    a('s_add_u32 s47, s32, %d' % PBUF)
    a('s_add_u32 s48, s39, %d' % PBUF)
    for k in range(4):
        a('s_add_u32 s%d, s6, %d' % (60 + k, 1 + k)); a('s_and_b32 s%d, s%d, 3' % (60 + k, 60 + k))
    def paddr(k):
        r = 26 + 2 * (k & 1)
        return ['s_lshl_b32 s32, s%d, 11' % (60 + k), 's_add_u32 s39, s32, s47', 's_add_u32 s32, s32, s48',
                'v_add_u32 v%d, s39, v23' % r, 'v_add_u32 v%d, s32, v23' % (r + 1)]
    for t in paddr(0): a(t)
    a('s_barrier')
    PF = [128, 160]
    def p_reads(k, after):
        reads = []; idx = {}
        for pair in range(2):
            for hh in range(2):
                for sp in range(2):
                    n = (pair * 2 + hh) * 2 + sp
                    r = PF[k & 1] + 4 * n
                    reads.append(('ds_read_b128 v[%d:%d], v%d offset:%d' % (r, r + 3, 26 + 2 * (k & 1) + pair, hh * 8192 + sp * 1024), after)); idx[(pair, hh, sp)] = len(reads) - 1
        return reads, idx
    cv1 = vw_cvt(ACC1, VW1, 0)
    setup = ['s_lshl2_add_u32 s33, s15, s8', 's_lshl_b32 s33, s33, 16', 's_add_u32 s33, s33, %d' % F_OFF, 's_lshl_b32 s32, s14, 10', 's_add_u32 s33, s33, s32',
             's_lshl_b32 s32, s6, 12', 's_add_u32 s36, s33, s32',
             's_lshl_b32 s32, s6, 14', 's_add_u32 s37, s33, s32',
             's_lshl2_add_u32 s38, s8, s14', 's_cmp_ge_u32 s38, 14', 's_cselect_b32 s36, 0x7f000000, s36',
             's_lshl2_add_u32 s40, s15, s8', 's_lshl2_add_u32 s40, s40, s14', 's_lshl_b32 s40, s40, 9', 's_add_u32 s40, s40, %d' % FLAGF_OFF,
             's_lshl_b32 s32, s6, 7', 's_add_u32 s41, s40, s32',
             's_lshl_b32 s32, s7, 6', 's_lshl4_add_u32 s32, s6, s32', 's_mul_i32 s42, s32, 1792', 's_mul_i32 s32, s5, 896', 's_add_u32 s42, s42, s32',
             's_lshl_b32 s32, s38, 6', 's_add_u32 s42, s42, s32']
    for t in setup: a(t)
    GR = 32
    GR = 192
    def outacc(k, nt): return OUT + 8 * k + 4 * nt
    def send(k, after):
        g = GR + 4 * k
        f = []
        for nt in range(2):
            acc = outacc(k, nt)
            f.append(('v_cvt_pk_bf16_f32 v%d, v%d, v%d' % (g + 2 * nt, acc, acc + 1), after))
            f.append(('v_cvt_pk_bf16_f32 v%d, v%d, v%d' % (g + 2 * nt + 1, acc + 2, acc + 3), after))
        f.append(('s_lshl_b32 s32, s%d, 14' % (60 + k), after))
        f.append(('s_add_u32 s43, s36, s32', after))
        f.append(('v_permlane16_swap_b32 v%d, v%d' % (g, g + 2), after))
        f.append(('v_permlane16_swap_b32 v%d, v%d' % (g + 1, g + 3), after))
        f.append(('buffer_store_dwordx4 v[%d:%d], v23, s[52:55], s43 offen sc1' % (g, g + 3), after))
        return f
    old = 0
    rk, ik = p_reads(0, -1)
    for t, _ in rk: a(t)
    for k in range(4):
        mfs = []
        for pair in range(2):
            vw = VW0 if pair == 0 else VW1
            for hh in range(2):
                for sp in range(2):
                    for nt in range(2):
                        j = 2 * hh + nt
                        A = vw + 4 * (2 * j + sp)
                        B = PF[k & 1] + 4 * ((pair * 2 + hh) * 2 + sp)
                        acc = outacc(k, nt)
                        c = '0' if (pair, hh, sp) == (0, 0, 0) else 'v[%d:%d]' % (acc, acc + 3)
                        mfs.append(('v_mfma_f32_16x16x32_bf16 v[%d:%d], v[%d:%d], v[%d:%d], %s' % (acc, acc + 3, A, A + 3, B, B + 3, c), ik[(pair, hh, sp)]))
        fill = []
        nf = 1
        if k == 0: fill = cv1 + [(t, 0) for t in paddr(1)]; nf = 5
        else:
            fill = ([(t, 0) for t in paddr(k + 1)] if k < 3 else []) + send(k - 1, 5); nf = 2
        nxt = p_reads(k + 1, 8)[0] if k < 3 else []
        if k == 0:
            pass
        run_phase(mfs, 8, nxt, per=2, maxout=15, fill=fill, nfill=nf)
        if k < 3: ik = p_reads(k + 1, -1)[1]
    lstamp(comp_st, CV)
    srd(a, 56, 28, 8 * 64 * 1792)
    a('v_mov_b32 v4, s41')
    a('v_lshlrev_b32 v5, 7, v2')
    a('v_add_u32 v5, s40, v5')
    a('s_cmp_ge_u32 s38, 14')
    a('s_cbranch_scc1 L_fin')
    a0 = outacc(3, 0); b0 = outacc(3, 1)
    for r in range(4): a('v_permlane16_swap_b32 v%d, v%d' % (a0 + r, b0 + r))
    a('s_or_b32 s32, s72, s73')
    a('s_cmp_lg_u32 s32, 0')
    a('s_cbranch_scc1 L_tnok')
    a.label('L_tn')
    a('s_sleep 4')
    a('v_mov_b32 v6, 0')
    a('global_load_dwordx2 v[10:11], v6, s[30:31] sc1')
    a('s_waitcnt vmcnt(0)')
    a('v_readfirstlane_b32 s72, v10')
    a('v_readfirstlane_b32 s73, v11')
    a('s_or_b32 s32, s72, s73')
    a('s_cmp_eq_u32 s32, 0')
    a('s_cbranch_scc1 L_tn')
    a.label('L_tnok')
    a('v_mov_b32 v10, s72'); a('v_mov_b32 v11, s73')
    a('s_waitcnt vmcnt(0)')
    lstamp(comp_st, CV)
    a('s_mov_b64 exec, 1')
    a('buffer_store_dwordx2 v[10:11], v4, s[52:55], 0 offen sc1')
    a('s_mov_b64 exec, 15')
    a.label('L_tpoll')
    a('buffer_load_dwordx2 v[8:9], v5, s[52:55], 0 offen sc1')
    a('s_waitcnt vmcnt(0)')
    a('v_cmp_ne_u64 vcc, v[10:11], v[8:9]')
    a('s_cbranch_vccz L_tpok')
    a('s_sleep %d' % cfg.poll_sleep)
    a('s_branch L_tpoll')
    a.label('L_tpok')
    a('s_mov_b64 exec, -1')
    lstamp(comp_st, CV)
    RR = 128
    for k in range(3):
        a('s_lshl_b32 s32, s%d, 12' % (60 + k))
        a('s_add_u32 s43, s37, s32')
        a('buffer_load_dwordx4 v[%d:%d], v23, s[52:55], s43 offen sc1' % (RR + 4 * k, RR + 4 * k + 3))
    own = [a0, a0 + 1, a0 + 2, a0 + 3, b0, b0 + 1, b0 + 2, b0 + 3]
    for k in range(3):
        a('s_waitcnt vmcnt(%d)' % (2 - k))
        for d in range(4):
            r = RR + 4 * k + d
            a('v_lshlrev_b32 v6, 16, v%d' % r)
            a('v_and_b32 v7, 0xffff0000, v%d' % r)
            a('v_add_f32 v%d, v%d, v6' % (own[2 * d], own[2 * d]))
            a('v_add_f32 v%d, v%d, v7' % (own[2 * d + 1], own[2 * d + 1]))
    for d in range(4): a('v_cvt_pk_bf16_f32 v%d, v%d, v%d' % (28 + d, own[2 * d], own[2 * d + 1]))
    a('buffer_store_dwordx4 v[28:31], v24, s[56:59], s42 offen')
    a.label('L_fin')
    n_comp = nst[0]
    def dump(rv, extra_stamp):
        a('s_waitcnt vmcnt(0)')
        a('s_memrealtime s[76:77]')
        a('s_waitcnt lgkmcnt(0)')
        a('v_writelane_b32 v%d, s76, %d' % (rv, extra_stamp))
        a('s_add_u32 s26, s26, %d' % (STAMP_OFF + (1 << 20)))
        a('s_addc_u32 s27, s27, 0')
        a('s_lshl_b32 s3, s2, 8')
        a('v_lshlrev_b32 v14, 2, v2')
        a('v_add_u32 v14, s3, v14')
        a('global_store_dword v14, v%d, s[26:27]' % rv)
    if comp_st:
        a('s_cmp_lg_u32 s14, %d' % cfg.lst)
        a('s_cbranch_scc1 L_done')
        dump(CV, n_comp)
        gen_main.nstamps = n_comp + 1
    a('s_endpgm')

    a.label('L_loader')
    a.inloader = True
    nst[0] = 1
    a('s_sub_u32 s14, s14, 4')
    a('v_lshrrev_b32 v3, 5, v2')
    a('v_and_b32 v4, 31, v2')
    a('v_lshrrev_b32 v4, 1, v4')
    a('v_and_b32 v5, 1, v2')
    a('v_lshlrev_b32 v5, 4, v5')
    a('v_lshrrev_b32 v6, 4, v2')
    a('s_and_b32 s32, s14, 1')
    a('s_lshl_b32 s33, s32, 2')
    a('v_add_u32 v6, s33, v6')
    a('v_and_b32 v7, 7, v2')
    a('v_xor_b32 v6, v6, v7')
    a('v_lshlrev_b32 v6, 4, v6')
    a('v_lshrrev_b32 v7, 3, v2')
    a('v_mul_u32_u24 v9, 896, v7')
    a('v_add_u32 v11, v6, v9')
    a('v_lshlrev_b32 v9, 9, v7')
    a('v_add_u32 v14, v6, v9')
    a('s_lshl_b32 s33, s32, 1')
    a('v_add_u32 v6, s33, v3')
    a('v_xor_b32 v6, v6, v4')
    a('v_lshlrev_b32 v6, 5, v6')
    a('v_lshlrev_b32 v7, 13, v3')
    a('v_add_u32 v6, v6, v7')
    a('v_add_u32 v10, v6, v5')
    a('v_xor_b32 v8, 128, v10')
    a('s_mul_i32 s56, s7, 57344')
    a('s_mul_i32 s32, s14, 7168')
    a('s_add_u32 s56, s56, s32')
    a('s_lshl_b32 s57, s14, 10')
    a('s_lshl_b32 s58, s9, 9')
    a('s_lshl_b32 s33, s14, 14')
    a('s_add_u32 s58, s58, s33')
    if cfg.rot:
        a('s_cmp_eq_u32 s7, 7'); a('s_cselect_b32 s90, 0, s7')
        if cfg.first0:
            a('s_sub_u32 s96, s7, 6'); a('s_cmp_ge_u32 s7, 6'); a('s_cselect_b32 s96, s96, s7'); a('s_add_u32 s96, s96, 1')
            a('s_mov_b32 s90, 0')
        a('s_lshr_b32 s94, s7, 2'); a('s_and_b32 s95, s7, 3')
    else:
        a('s_mov_b32 s90, 0'); a('s_mov_b32 s94, 0'); a('s_mov_b32 s95, 0')
    a('v_lshlrev_b32 v27, 7, v2')
    a('s_waitcnt lgkmcnt(0)')
    if load_st: a('v_writelane_b32 v%d, s78, 0' % LV)
    srd(a, 40, 22, 3670016); srd(a, 36, 16, 458752)
    ops = []; known = [-1]
    def vm(tag, txt):
        a(txt); ops.append(tag)
    def wait_for(tags):
        idxs = [i for i, t in enumerate(ops) if t in tags]
        if not idxs: return
        m = max(idxs)
        if m <= known[0]: return
        n = len(ops) - 1 - m
        assert n <= 63, n
        a('s_waitcnt vmcnt(%d)' % n); known[0] = m
    def dma(tag, vreg, srdn, gsg, gimm, limm):
        a('s_add_u32 m0, s57, %d' % limm)
        a('s_add_u32 s32, %s, %d' % (gsg, gimm))
        vm(tag, 'buffer_load_dwordx4 %s, s[%d:%d], s32 offen lds' % (vreg, srdn, srdn + 3))
    def item_pieces(it):
        sl = SLOT_OF[it]
        L = []; pre = []; post = []
        if it[0] == 'W':
            pre = ['s_lshl_b32 s92, s90, 19', 's_add_u32 s92, s92, s58', 's_lshl_b32 s93, s90, 7', 's_add_u32 s93, s93, s56']
            for t in range(8):
                L.append(('v10' if t % 2 == 0 else 'v8', 40, 's92', t * 65536, sl + t * 4096))
                if t == 1: L.append(('v11', 36, 's93', 0, sl + 32768))
                if t == 3: L.append(('v11', 36, 's93', 4 * 7168, sl + 32768 + 4096))
            if cfg.first0 and cfg.rot:
                if it == 'W0': pre += ['s_mov_b32 s90, s96']
                else: pre += ['s_add_u32 s90, s90, 1', 's_cmp_ge_u32 s90, 7', 's_cselect_b32 s90, 1, s90']
            else:
                pre += ['s_add_u32 s90, s90, 1', 's_cmp_ge_u32 s90, 7', 's_cselect_b32 s90, 0, s90']
        elif it == 'K':
            for t in range(8): L.append(('v13' if t & 1 else 'v12', 44, 's60', t * 4096, sl + t * 4096))
        else:
            n = int(it[1])
            pre = ['s_add_u32 s91, s95, %d' % n, 's_and_b32 s91, s91, 3', 's_xor_b32 s89, s94, %d' % (n >> 2),
                   's_mul_i32 s92, s89, %d' % (2 * 229376), 's_mul_i32 s88, s91, 57344', 's_add_u32 s92, s92, s88', 's_add_u32 s92, s92, s59',
                   's_lshl_b32 s93, s89, 15', 's_lshl_b32 s88, s91, 7', 's_add_u32 s93, s93, s88', 's_add_u32 s93, s93, s61']
            for t in range(8):
                L.append(('v15', 52, 's92', (t >> 2) * 229376 + (t & 3) * 16 * 896, sl + t * 4096))
                if t == 1 and not cfg.nov: L.append(('v14', 48, 's93', 0, sl + 32768))
                if t == 3 and not cfg.nov: L.append(('v14', 48, 's93', 4 * 4096, sl + 32768 + 4096))
        return pre, L
    LOADS = ['W0','W1','W2','W3','W4','W5','W6','K','B0','B1','B2','B3','B4','B5','B6','B7']
    stream = []
    endidx = {}
    for it in LOADS:
        pre, L = item_pieces(it)
        for k, pc in enumerate(L): stream.append((it, k, pre if k == 0 else [], pc))
        endidx[it] = len(stream)
    FREE = dict(W0=-1, W1=-1, W2=-1, W3=-1, W4=1, W5=2, W6=3, K=4, B0=5, B1=7, B2=8, B3=8, B4=9, B5=10, B6=11, B7=12)
    pos = [0]
    hooks = {}
    def issue_upto(limit, e):
        while pos[0] < min(limit, len(stream)):
            it, k, pre, (vr, sr, gs, gi, lo) = stream[pos[0]]
            if FREE[it] > e: break
            for t in pre: a(t)
            dma(it, vr, sr, gs, gi, lo)
            pos[0] += 1
            if pos[0] == endidx[it] and it in hooks: hooks[it]()
    def touch(srdn, soff, nl):
        a('s_mov_b64 s[34:35], exec')
        a('s_mov_b32 exec_lo, 0x%x' % ((1 << nl) - 1)); a('s_mov_b32 exec_hi, 0')
        vm('T', 'buffer_load_dword v31, v27, s[%d:%d], %s offen' % (srdn, srdn + 3, soff))
        a('s_mov_b64 exec, s[34:35]')
    def xt():
        a('s_mul_i32 s32, s8, 112'); a('s_mul_i32 s33, s14, 28'); a('s_add_u32 s32, s32, s33'); a('s_lshl_b32 s32, s32, 7')
        a('s_mul_i32 s33, s7, 57344'); a('s_add_u32 s33, s32, s33')
        touch(36, 's33', 28)
    def vt():
        a('s_lshl_b32 s32, s8, 14'); a('s_add_u32 s33, s62, s32'); a('s_lshl_b32 s32, s14, 12'); a('s_add_u32 s33, s33, s32')
        touch(48, 's33', 32)
    if cfg.xtouch: hooks['W0'] = xt
    if cfg.vtouch: hooks['B0'] = vt
    issue_upto(endidx['W0'], -1)
    srd(a, 44, 18, 2097152); srd(a, 48, 20, 2097152); srd(a, 52, 24, 3670016)
    srd(a, 64, 26, WS_SRD_BYTES)
    a('s_lshl3_add_u32 s60, s7, s10')
    a('s_lshl_b32 s60, s60, 15')
    a('s_add_u32 s60, s60, s57')
    a('s_lshl_b32 s32, s6, 1')
    a('s_lshl3_add_u32 s61, s7, s32')
    a('s_lshl_b32 s61, s61, 15')
    a('s_mov_b32 s62, s61')
    a('s_lshl_b32 s32, s14, 12')
    a('s_add_u32 s61, s61, s32')
    a('s_mul_i32 s59, s6, %d' % (4 * 229376))
    a('s_lshl_b32 s32, s8, 8')
    a('s_add_u32 s59, s59, s32')
    a('s_mul_i32 s32, s14, 3584')
    a('s_add_u32 s59, s59, s32')
    a('s_lshl_b32 s32, s14, 1')
    a('v_add_u32 v6, s32, v3')
    a('v_and_b32 v7, 31, v2')
    a('v_xor_b32 v7, v7, v6')
    a('v_lshlrev_b32 v7, 4, v7')
    a('v_lshlrev_b32 v20, 9, v3')
    a('v_add_u32 v12, v7, v20')
    a('v_xor_b32 v13, 128, v12')
    a('v_lshrrev_b32 v6, 4, v2')
    a('s_lshr_b32 s32, s14, 1')
    a('s_lshl_b32 s32, s32, 2')
    a('v_add_u32 v7, s32, v6')
    a('v_and_b32 v20, 15, v2')
    a('v_lshrrev_b32 v20, 1, v20')
    a('v_xor_b32 v7, v7, v20')
    a('v_lshlrev_b32 v7, 5, v7')
    a('v_mul_u32_u24 v6, 896, v6')
    a('v_add_u32 v7, v7, v6')
    a('v_add_u32 v15, v7, v5')
    a('v_lshlrev_b32 v16, 4, v2')
    a('v_add_u32 v17, s57, v16')
    a('v_mov_b32 v22, 0')
    a('v_mov_b32 v24, 0'); a('v_mov_b32 v25, 0')
    a('s_lshl2_add_u32 s32, s15, s6')
    a('s_lshl2_add_u32 s32, s32, s14')
    a('s_lshl_b32 s32, s32, 9')
    a('s_add_u32 s32, s32, %d' % FLAGP_OFF)
    a('s_add_u32 s68, s26, s32')
    a('s_addc_u32 s69, s27, 0')
    a('s_mov_b32 s72, 0'); a('s_mov_b32 s73, 0')
    issue_upto(endidx['W0'] + cfg.cap, -1)
    a('s_or_b32 s32, s2, s14')
    a('s_cmp_lg_u32 s32, 0')
    a('s_cbranch_scc1 L_nononce')
    a('s_memrealtime s[32:33]')
    a('s_waitcnt lgkmcnt(0)')
    a('s_or_b32 s32, s32, 1')
    a('v_mov_b32 v20, s32'); a('v_mov_b32 v21, s33')
    a('s_mov_b64 s[34:35], exec')
    a('s_mov_b64 exec, 1')
    a('global_store_dwordx2 v22, v[20:21], s[30:31] sc1')
    a('s_mov_b64 exec, s[34:35]')
    a.label('L_nononce')
    lstamp(load_st, LV)
    wait_for(['W0'])
    lstamp(load_st, LV)
    a('s_barrier')
    NEED = {1: ['W1'], 2: ['W2'], 3: ['W3'], 4: ['W4'], 5: ['W5'], 6: ['W6'] + (['K'] if cfg.kpre else []), 7: ['K'], 8: ['B0'], 9: ['B1'], 10: ['B2'], 11: ['B3'],
            12: ['B4'], 13: ['B5'], 14: ['B6'], 15: ['B7'], 16: ['P']}
    lab = [0]
    def w3_only(fn):
        lab[0] += 1
        L = 'L_w3s_%d' % lab[0]
        a('s_cmp_lg_u32 s14, 3')
        a('s_cbranch_scc1 %s' % L)
        fn()
        a.label(L)
    def nonce_check():
        lab[0] += 1
        Lg = 'L_gn_%d' % lab[0]; Lh = 'L_hn_%d' % lab[0]
        a.label(Lg)
        a('v_readfirstlane_b32 s72, v24')
        a('v_readfirstlane_b32 s73, v25')
        a('s_or_b32 s32, s72, s73')
        a('s_cmp_lg_u32 s32, 0')
        a('s_cbranch_scc1 %s' % Lh)
        a('s_sleep 4')
        a('global_load_dwordx2 v[24:25], v22, s[30:31] sc1')
        a('s_waitcnt vmcnt(0)')
        a('s_branch %s' % Lg)
        a.label(Lh)
    def flag_write(off, idx_code):
        idx_code()
        a('s_lshl_b32 s32, s32, 7')
        a('s_add_u32 s32, s32, %d' % off)
        a('v_mov_b32 v26, s32')
        a('s_mov_b64 s[34:35], exec')
        a('s_mov_b64 exec, 1')
        a('buffer_store_dwordx2 v[24:25], v26, s[64:67], 0 offen sc1')
        a('s_mov_b64 exec, s[34:35]')
    def spoll_issue():
        for k in range(4): a('s_load_dwordx2 s[%d:%d], s[68:69], 0x%x glc' % (80 + 2 * k, 81 + 2 * k, 128 * k))
    def spoll_check():
        lab[0] += 1
        Lp = 'L_sp_%d' % lab[0]; Lo = 'L_so_%d' % lab[0]; Lr = 'L_sr_%d' % lab[0]
        a.label(Lp)
        a('s_waitcnt lgkmcnt(0)')
        for k in range(4):
            a('s_cmp_eq_u64 s[%d:%d], s[72:73]' % (80 + 2 * k, 81 + 2 * k))
            a('s_cbranch_scc0 %s' % Lr)
        a('s_branch %s' % Lo)
        a.label(Lr)
        a('s_sleep 2')
        spoll_issue()
        a('s_branch %s' % Lp)
        a.label(Lo)
    def idxP_own(): a('s_lshl2_add_u32 s32, s15, s6'); a('s_lshl2_add_u32 s32, s32, s8')
    for e in range(16):
        nd = NEED[e + 1]
        last = max([endidx.get(x, len(stream)) for x in nd]) if nd else len(stream)
        issue_upto(last + cfg.capx.get(e, cfg.cap), e)
        if e == 6:
            vm('N', 'global_load_dwordx2 v[24:25], v22, s[30:31]')
        if e == 10:
            wait_for(['N'])
            nonce_check()
        if e == 13:
            spoll_check()
            a('s_lshl2_add_u32 s33, s15, s6')
            a('s_lshl_b32 s33, s33, 15')
            a('s_lshl_b32 s34, s14, 11')
            a('s_add_u32 s33, s33, s34')
            for t in range(8):
                a('s_add_u32 m0, s34, %d' % (PBUF + (t >> 1) * 8192 + (t & 1) * 1024))
                a('s_add_u32 s32, s33, %d' % (P_OFF + (t >> 1) * 8192 + (t & 1) * 1024))
                vm('P', 'buffer_load_dwordx4 v16, s[64:67], s32 offen sc1 lds')
        wait_for(NEED[e + 1])
        if e == 11: spoll_issue()
        a('s_barrier')
        lstamp(load_st, LV)
    n_load = nst[0]
    if load_st:
        a('s_cmp_lg_u32 s14, %d' % (cfg.lst - 4))
        a('s_cbranch_scc1 L_done')
        dump(LV, n_load)
        gen_main.nstamps = n_load + 1
    a.label('L_done')
    a('s_endpgm')
    return a.text()

def build(cfg):
    K = NAME + '_kernel'
    return kernel_file([(K, gen_main(cfg), 256, 102, 256)], [(K, (256, 1, 1), (512, 1, 1), LDS_BYTES)])

def mk(name, **kw):
    c = Cfg()
    for k, v in kw.items(): setattr(c, k, v)
    open(name, 'w').write(build(c))
    if c.lst is not None: print(name, 'nstamps', gen_main.nstamps)

if __name__ == '__main__':
    mk('v15.s')
    mk('v15_c.s', lst=0)
    mk('v15_l.s', lst=4)
    mk('v15_l_nocomp.s', lst=4, nocomp=True)
    mk('v15_l_nocomp_nov.s', lst=4, nocomp=True, nov=True)
    mk('v15_l_nocomp_c16.s', lst=4, nocomp=True, cap=16)
    mk('v15_l_nocomp_c9.s', lst=4, nocomp=True, cap=9)
```

```python
import sys
from asmlib import *

SLOT = 40960
SL = [0, SLOT, 2 * SLOT, 3 * SLOT]
LDS_BYTES = 163840
P_OFF = 0
F_OFF = 2 << 20
FLAGP_OFF = 12 << 20
FLAGF_OFF = (12 << 20) + 1024 * 128
WS_SRD_BYTES = (12 << 20) + 2048 * 128
STAMP_OFF = 128 << 20
SLOT_IDX = dict(W0=0, W1=1, W2=2, W3=3, W4=0, W5=1, W6=2, K=3, B0=0, XQ=1, B1=2, B2=3, B3=1, B4=0, B5=2, B6=3, B7=1, P=0)
SLOT_OF = {k: SL[v] for k, v in SLOT_IDX.items()}
XBUF = SLOT_OF['XQ']
PBUF = SLOT_OF['P']

class Cfg:
    lst = None
    noload = False
    nocomp = False
    prio = 2
    poll_sleep = 1
    rot = True
    xtouch = True
    vtouch = True
    kpre = False
    first0 = True
    cap = 12
    capx = {}
    nov = False
    coarse = False
    ntset = ()
    ktouch = None
    wolin = False

def srd(a, d, src, size):
    a('s_mov_b32 s%d, s%d' % (d, src))
    a('s_and_b32 s%d, s%d, 0xffff' % (d + 1, src + 1))
    a('s_mov_b32 s%d, %d' % (d + 2, size))
    a('s_mov_b32 s%d, 0x20000' % (d + 3))

def gen_main(cfg):
    class A2(Asm):
        inloader = False; intail = False
        def __call__(self, s=''):
            t = s.strip()
            if cfg.noload and t.startswith('buffer_load') and self.inloader and ' lds' in t: return
            if cfg.nocomp and not self.inloader and not self.intail and (t.startswith('ds_read') or t.startswith('v_mfma') or t.startswith('ds_write')): return
            Asm.__call__(self, s)
    a = A2()
    nst = [0]
    def lstamp(role_ok, vreg):
        if cfg.lst is None or not role_ok: return
        n = nst[0]; nst[0] += 1
        a('s_memrealtime s[76:77]')
        a('s_waitcnt lgkmcnt(0)')
        a('v_writelane_b32 v%d, s76, %d' % (vreg, n))
    comp_st = cfg.lst is not None and cfg.lst < 4
    load_st = cfg.lst is not None and cfg.lst >= 4
    CV = 1; LV = 30

    def run_phase(mfs, old_n, reads_new, events=None, fill=None, per=1, maxout=15, pre=0, done0=-1, nfill=1):
        issued = old_n; done = done0
        allr = [None] * old_n + list(reads_new)
        fill_ = list(fill or [])
        ev = events or {}
        k = 0
        while k < pre and issued < len(allr) and allr[issued][1] < 0 and (issued - 1 - done) < maxout:
            a(allr[issued][0]); issued += 1; k += 1
        for mi, (txt, need) in enumerate(mfs):
            while need >= issued:
                assert allr[issued][1] <= mi - 1, (mi, issued)
                if (issued - 1 - done) >= maxout:
                    a('s_waitcnt lgkmcnt(%d)' % (maxout - 1)); done = issued - maxout
                a(allr[issued][0]); issued += 1
            if need > done:
                a('s_waitcnt lgkmcnt(%d)' % (issued - 1 - need)); done = need
            a(txt)
            for e in ev.get(mi, []): a(e)
            k = 0
            while k < per and issued < len(allr) and allr[issued][1] <= mi and (issued - 1 - done) < maxout:
                a(allr[issued][0]); issued += 1; k += 1
            k = 0
            while k < nfill and fill_ and fill_[0][1] <= mi:
                a(fill_.pop(0)[0]); k += 1
        while issued < len(allr):
            if (issued - 1 - done) >= maxout:
                a('s_waitcnt lgkmcnt(%d)' % (maxout - 1)); done = issued - maxout
            a(allr[issued][0]); issued += 1
        for f in fill_: a(f[0])
        return issued - 1 - done

    a('s_cmp_ge_u32 s2, 256')
    a('s_cbranch_scc1 L_done')
    a('s_and_b32 s3, s2, 7')
    a('s_lshr_b32 s5, s3, 2')
    a('s_mul_i32 s11, s5, 40')
    a('s_add_u32 s12, s0, s11')
    a('s_addc_u32 s13, s1, 0')
    a('s_load_dwordx8 s[16:23], s[12:13], 0')
    a('s_load_dwordx2 s[24:25], s[12:13], 32')
    a('s_load_dwordx4 s[28:31], s[0:1], 80')
    a('s_load_dwordx2 s[26:27], s[0:1], 96')
    if cfg.lst is not None:
        a('s_memrealtime s[78:79]')
    a('v_lshrrev_b32 v1, 6, v0')
    a('v_and_b32 v2, 63, v0')
    a('v_readfirstlane_b32 s14, v1')
    a('s_lshr_b32 s4, s2, 3')
    a('s_and_b32 s6, s3, 3')
    a('s_lshr_b32 s7, s4, 2')
    a('s_and_b32 s8, s4, 3')
    a('s_lshl2_add_u32 s9, s6, s8')
    a('s_lshr_b32 s10, s9, 1')
    a('s_lshl3_add_u32 s15, s5, s7')
    a('s_cmp_ge_u32 s14, 4')
    a('s_cbranch_scc1 L_loader')

    if cfg.prio: a('s_setprio %d' % cfg.prio)
    a('v_and_b32 v3, 15, v2')
    a('v_lshrrev_b32 v4, 4, v2')
    a('v_lshrrev_b32 v5, 2, v3')
    a('v_and_b32 v6, 3, v2')
    a('v_lshlrev_b32 v7, 3, v4')
    a('v_add_u32 v7, v7, v5')
    a('v_lshlrev_b32 v9, 9, v7')
    a('v_lshlrev_b32 v8, 3, v6')
    a('v_add_u32 v9, v9, v8')
    a('v_xor_b32 v8, s14, v4')
    a('v_and_b32 v8, 1, v8')
    a('v_lshlrev_b32 v8, 2, v8')
    a('s_lshr_b32 s32, s14, 1')
    a('s_lshl_b32 s32, s32, 3')
    a('v_add_u32 v8, s32, v8')
    a('v_add_u32 v8, v8, v5')
    a('v_lshlrev_b32 v8, 5, v8')
    a('v_add_u32 v10, v9, v8')
    for mt in range(1, 4):
        a('v_xor_b32 v%d, %d, v10' % (10 + mt, 32 * mt))
    a('v_lshlrev_b32 v9, 8, v7')
    a('v_and_b32 v8, 1, v4')
    a('v_lshlrev_b32 v8, 2, v8')
    a('v_add_u32 v8, v8, v5')
    a('s_lshl_b32 s32, s14, 1')
    a('v_xor_b32 v8, s32, v8')
    a('v_lshlrev_b32 v8, 5, v8')
    a('v_add_u32 v9, v9, v8')
    a('v_lshlrev_b32 v8, 3, v6')
    a('v_add_u32 v21, v9, v8')
    a('v_xor_b32 v22, 32, v21')
    a('v_lshrrev_b32 v7, 1, v3')
    a('v_xor_b32 v7, v7, v4')
    a('v_lshlrev_b32 v7, 4, v7')
    a('v_lshlrev_b32 v8, 7, v3')
    a('v_add_u32 v7, v7, v8')
    a('v_add_u32 v14, 32768, v7')
    a('v_xor_b32 v15, 64, v14')
    a('v_xor_b32 v7, v3, v4')
    a('v_lshlrev_b32 v7, 4, v7')
    a('v_lshlrev_b32 v8, 9, v3')
    a('v_add_u32 v16, v7, v8')
    for j in range(1, 4):
        a('v_xor_b32 v%d, %d, v16' % (16 + j, 64 * j))
    a('v_lshrrev_b32 v7, 1, v4')
    a('s_lshl_b32 s32, s14, 3')
    a('v_or_b32 v7, s32, v7')
    a('v_xor_b32 v7, v7, v3')
    a('v_lshlrev_b32 v7, 4, v7')
    a('v_lshlrev_b32 v8, 9, v3')
    a('v_add_u32 v7, v7, v8')
    a('v_and_b32 v8, 1, v4')
    a('v_lshlrev_b32 v8, 3, v8')
    a('v_add_u32 v7, v7, v8')
    a('v_add_u32 v20, %d, v7' % XBUF)
    a('v_xor_b32 v3, 32, v20'); a('v_xor_b32 v5, 64, v20'); a('v_xor_b32 v6, 96, v20')
    a('v_lshlrev_b32 v23, 4, v2')
    a('v_and_b32 v7, 15, v2')
    a('v_mul_u32_u24 v7, 1792, v7')
    a('v_and_b32 v8, 1, v4')
    a('v_lshlrev_b32 v8, 5, v8')
    a('v_add_u32 v7, v7, v8')
    a('v_lshrrev_b32 v8, 1, v4')
    a('v_lshlrev_b32 v8, 4, v8')
    a('v_add_u32 v24, v7, v8')
    ACC0 = 64; ACC1 = 192
    for r in range(64):
        a('v_mov_b32 v%d, 0' % (ACC0 + r))
    a('s_mov_b32 s32, %d' % SLOT_OF['K'])
    for j, r in enumerate((7, 8, 9, 25)): a('v_add_u32 v%d, s32, v%d' % (r, 16 + j))
    a('s_mov_b32 s46, 0x3db8aa3b')
    a('s_waitcnt lgkmcnt(0)')
    if comp_st:
        a('v_writelane_b32 v%d, s78, 0' % CV); nst[0] = 1
    srd(a, 52, 26, WS_SRD_BYTES)
    a('s_lshl2_add_u32 s33, s15, s6')
    a('s_lshl2_add_u32 s33, s33, s8')
    a('s_lshl_b32 s33, s33, 13')
    a('s_lshl_b32 s32, s14, 11')
    a('s_add_u32 s33, s33, s32')
    a('s_lshl2_add_u32 s49, s15, s6')
    a('s_lshl2_add_u32 s49, s49, s14')
    a('s_lshl2_add_u32 s49, s49, s8')
    a('s_lshl_b32 s49, s49, 7')
    a('s_add_u32 s49, s49, %d' % FLAGP_OFF)
    setup = ['s_lshl2_add_u32 s50, s15, s8', 's_lshl_b32 s50, s50, 16', 's_add_u32 s50, s50, %d' % F_OFF, 's_lshl_b32 s32, s14, 10', 's_add_u32 s50, s50, s32',
             's_lshl_b32 s32, s6, 12', 's_add_u32 s36, s50, s32',
             's_lshl_b32 s32, s6, 14', 's_add_u32 s37, s50, s32',
             's_lshl2_add_u32 s38, s8, s14', 's_cmp_ge_u32 s38, 14', 's_cselect_b32 s36, 0x7f000000, s36',
             's_lshl2_add_u32 s40, s15, s8', 's_lshl2_add_u32 s40, s40, s14', 's_lshl_b32 s40, s40, 9', 's_add_u32 s40, s40, %d' % FLAGF_OFF,
             's_lshl_b32 s32, s6, 7', 's_add_u32 s41, s40, s32',
             's_lshl_b32 s32, s7, 6', 's_lshl4_add_u32 s32, s6, s32', 's_mul_i32 s42, s32, 1792', 's_mul_i32 s32, s5, 896', 's_add_u32 s42, s42, s32',
             's_lshl_b32 s32, s38, 6', 's_add_u32 s42, s42, s32']
    for t in setup: a(t)
    if cfg.rot: a('s_lshr_b32 s32, s7, 2')
    else: a('s_mov_b32 s32, 0')
    a('s_lshl_b32 s32, s32, 14')
    a('s_xor_b32 s39, s32, 16384')
    a('s_add_u32 s47, s32, %d' % PBUF)
    a('s_add_u32 s48, s39, %d' % PBUF)
    for k in range(4):
        a('s_add_u32 s%d, s6, %d' % (60 + k, 1 + k)); a('s_and_b32 s%d, s%d, 3' % (60 + k, 60 + k))
    srd(a, 56, 28, 8 * 64 * 1792)
    def tr_reads(kind, s, m, after):
        base = (128 if s == 0 else 160) + 4 * m
        if kind == 'A': reg, off, d2 = 26 + m, s * 16384, 2048
        else: reg, off, d2 = 26 + (m & 1), (m >> 1) * 16384 + s * 8192, 1024
        return [('ds_read_b64_tr_b16 v[%d:%d], v%d offset:%d' % (base, base + 1, reg, off), after),
                ('ds_read_b64_tr_b16 v[%d:%d], v%d offset:%d' % (base + 2, base + 3, reg, off + d2), after)]
    def n_read(s, q, after):
        base = (144 if s == 0 else 176) + 4 * q
        return [('ds_read_b128 v[%d:%d], v%d offset:%d' % (base, base + 3, 30 + s, q * 2048), after)]
    def set_reads(kind, s, after):
        reads = []; idx = {}
        reads += tr_reads(kind, s, 0, after); idx[('T', 0)] = len(reads) - 1
        for q in range(4):
            reads += n_read(s, q, after); idx[('N', q)] = len(reads) - 1
        for m in range(1, 4):
            reads += tr_reads(kind, s, m, after); idx[('T', m)] = len(reads) - 1
        return reads, idx
    def mm(kind, s, m, q, accb, zero=False):
        tb = (128 if s == 0 else 160) + 4 * m
        nb = (144 if s == 0 else 176) + 4 * q
        acc = accb + 4 * (m * 4 + q)
        A, B = (tb, nb) if kind == 'A' else (nb, tb)
        c = '0' if zero else 'v[%d:%d]' % (acc, acc + 3)
        return 'v_mfma_f32_16x16x32_bf16 v[%d:%d], v[%d:%d], v[%d:%d], %s' % (acc, acc + 3, A, A + 3, B, B + 3, c)
    def addr_upd(kind, slot):
        if kind == 'A':
            return ['v_add_u32 v%d, %s, v%d' % (26 + i, slot, 10 + i) for i in range(4)] + ['v_add_u32 v%d, %s, v%d' % (30 + i, slot, 14 + i) for i in range(2)]
        return ['v_add_u32 v%d, %s, v%d' % (26 + i, slot, 21 + i) for i in range(2)] + ['v_add_u32 v%d, %s, v%d' % (30 + i, slot, 14 + i) for i in range(2)]
    _, IDX = set_reads('A', 0, -1)
    def needs(m, q): return max(IDX[('T', m)], IDX[('N', q)])
    adv = ['s_add_u32 s34, s34, %d' % SLOT, 's_cmp_ge_u32 s34, %d' % (4 * SLOT), 's_cselect_b32 s34, 0, s34', 's_add_u32 s35, s35, 1']
    a('s_mov_b32 s34, 0')
    a('s_mov_b32 s35, 0')
    for t in addr_upd('A', 's34'): a(t)
    a('s_barrier')
    lstamp(comp_st, CV)
    for t, _ in set_reads('A', 0, -1)[0]: a(t)
    a.label('L_a1')
    PER = 2 if cfg.coarse else 1
    def nd(m, q, first):
        if cfg.coarse: return 11 if first else -1
        return needs(m, q)
    mq = [(mm('A', 0, m, q, ACC0), nd(m, q, m == 0 and q == 0)) for m in range(4) for q in range(4)]
    run_phase(mq, 12, set_reads('A', 1, -1)[0], fill=[(t, 8) for t in adv], per=PER)
    mp = [(mm('A', 1, m, q, ACC0), nd(m, q, m == 0 and q == 0)) for m in range(4) for q in range(4)]
    mp3 = list(mp); mp3[3] = (mp[3][0], 11)
    run_phase(mp3, 12, set_reads('A', 0, 3)[0], events={3: addr_upd('A', 's34') + ['s_barrier']}, per=PER)
    a('s_cmp_lt_u32 s35, 6')
    a('s_cbranch_scc1 L_a1')
    QF = 160; KF = 192; SACC = 32
    def kread(s, kt, after):
        n = s * 4 + kt
        r = KF + 4 * (n % 16)
        return ('ds_read_b128 v[%d:%d], v%d offset:%d' % (r, r + 3, (7, 8, 9, 25)[s & 3], kt * 8192 + (s >> 2) * 256), after)
    qaddr = [20, 3, 5, 6]
    QP = 32
    r1, i1x = set_reads('A', 1, -1)
    ml = []
    for m in range(4):
        for q in range(4): ml.append((mm('A', 0, m, q, ACC0), needs(m, q)))
        for q in range(4): ml.append((mm('A', 1, m, q, ACC0), 12 + max(i1x[('T', m)], i1x[('N', q)])))
    if cfg.kpre:
        ml[14] = (ml[14][0], 12 + 12 + 5); ml[18] = (ml[18][0], 12 + 12 + 11); ml[21] = (ml[21][0], 12 + 12 + 15)
    ops2 = list(r1)
    if cfg.kpre:
        for s_ in range(4):
            for kt in range(4): ops2.append(kread(s_, kt, -1))
    fl = []; wr = []
    for m in range(3):
        for q in range(4):
            tl = m * 4 + q
            done_at = 8 * m + 4 + q
            acc = ACC0 + 4 * tl; t = QP + 2 * tl
            fl.append(('v_cvt_pk_bf16_f32 v%d, v%d, v%d' % (t, acc, acc + 1), done_at + 8))
            fl.append(('v_cvt_pk_bf16_f32 v%d, v%d, v%d' % (t + 1, acc + 2, acc + 3), done_at + 8))
            wr.append(('ds_write_b64 v%d, v[%d:%d] offset:%d' % (qaddr[m], t, t + 1, q * 8192), done_at + 10))
    wr = [w for w in wr if w[1] <= 31]
    nwr = len(wr)
    run_phase(ml, 12, ops2 + wr, per=2, fill=fl, nfill=2, maxout=15)
    lstamp(comp_st, CV)
    for tl in range(nwr, 12):
        m, q = tl >> 2, tl & 3
        a('ds_write_b64 v%d, v[%d:%d] offset:%d' % (qaddr[m], QP + 2 * tl, QP + 2 * tl + 1, q * 8192))
    a('s_nop 5')
    for q in range(4):
        tl = 12 + q
        acc = ACC0 + 4 * tl; t = QP + 2 * tl
        a('v_cvt_pk_bf16_f32 v%d, v%d, v%d' % (t, acc, acc + 1))
        a('v_cvt_pk_bf16_f32 v%d, v%d, v%d' % (t + 1, acc + 2, acc + 3))
        a('ds_write_b64 v%d, v[%d:%d] offset:%d' % (qaddr[3], t, t + 1, q * 8192))
    a('s_lshl_b32 s32, s14, 13')
    a('s_add_u32 s32, s32, %d' % XBUF)
    for j in range(4): a('v_add_u32 v%d, s32, v%d' % (26 + j, 16 + j))
    a('s_waitcnt lgkmcnt(0)')
    a('v_mov_b32 v62, 0')
    a('global_load_dwordx2 v[62:63], v62, s[30:31]')
    a('s_barrier')
    lstamp(comp_st, CV)
    reads = []; mf = []; idx = {}
    npre = 16 if cfg.kpre else 0
    order = []
    if cfg.kpre:
        for s in range(4): order.append(('Q', s))
        for s in range(4, 8):
            order.append(('Q', s))
            for kt in range(4): order.append(('K', s, kt))
    else:
        for s in range(8):
            order.append(('Q', s))
            for kt in range(4): order.append(('K', s, kt))
    for o in order:
        if o[0] == 'Q':
            s = o[1]
            reads.append(('ds_read_b128 v[%d:%d], v%d offset:%d' % (QF + 4 * s, QF + 4 * s + 3, 26 + (s & 3), (s >> 2) * 256), -1))
        else:
            s, kt = o[1], o[2]
            reads.append(kread(s, kt, s * 4 + kt - 16))
        idx[o] = len(reads) - 1
    for s in range(8):
        for kt in range(4):
            r = KF + 4 * ((s * 4 + kt) % 16)
            acc = SACC + 4 * kt
            c = 'v[%d:%d]' % (acc, acc + 3) if s else '0'
            need = max(idx[('Q', s)], idx.get(('K', s, kt), -1))
            mf.append(('v_mfma_f32_16x16x32_bf16 v[%d:%d], v[%d:%d], v[%d:%d], %s' % (acc, acc + 3, r, r + 3, QF + 4 * s, QF + 4 * s + 3, c), need))
    zero0 = [('v_mov_b32 v%d, 0' % (ACC0 + r), 0) for r in range(64)]
    run_phase(mf, 0, reads, pre=(4 if cfg.kpre else 10), per=2, maxout=14)
    for t in addr_upd('B', SLOT_OF['B0']): a(t)
    a('s_barrier')
    lstamp(comp_st, CV)
    for t, _ in set_reads('B', 0, -1)[0]: a(t)
    S = SACC
    sm = []
    sm += ['v_max3_f32 v48, v%d, v%d, v%d' % (S, S + 1, S + 2), 'v_max3_f32 v49, v%d, v%d, v%d' % (S + 3, S + 4, S + 5),
           'v_max3_f32 v50, v%d, v%d, v%d' % (S + 6, S + 7, S + 8), 'v_max3_f32 v51, v%d, v%d, v%d' % (S + 9, S + 10, S + 11),
           'v_max3_f32 v48, v48, v%d, v%d' % (S + 12, S + 13), 'v_max3_f32 v49, v49, v%d, v%d' % (S + 14, S + 15),
           'v_max3_f32 v48, v48, v50, v51', 'v_max_f32 v48, v48, v49',
           'v_mov_b32 v49, v48', 's_nop 1', 'v_permlane16_swap_b32 v48, v49', 'v_max_f32 v48, v48, v49',
           'v_mov_b32 v49, v48', 's_nop 1', 'v_permlane32_swap_b32 v48, v49', 'v_max_f32 v48, v48, v49', 'v_mul_f32 v48, s46, v48']
    sm += ['v_fma_f32 v%d, v%d, s46, -v48' % (S + r, S + r) for r in range(16)]
    sm += ['v_exp_f32 v%d, v%d' % (S + r, S + r) for r in range(16)]
    sm += ['v_add_f32 v50, v%d, v%d' % (S, S + 1), 'v_add_f32 v51, v%d, v%d' % (S + 2, S + 3)]
    for r in range(4, 16, 2):
        sm += ['v_add_f32 v50, v50, v%d' % (S + r), 'v_add_f32 v51, v51, v%d' % (S + 1 + r)]
    sm += ['v_add_f32 v50, v50, v51', 'v_mov_b32 v49, v50', 's_nop 1', 'v_permlane16_swap_b32 v50, v49', 'v_add_f32 v50, v50, v49',
           'v_mov_b32 v49, v50', 's_nop 1', 'v_permlane32_swap_b32 v50, v49', 'v_add_f32 v50, v50, v49', 'v_rcp_f32 v50, v50', 's_nop 0']
    sm += ['v_mul_f32 v%d, v%d, v50' % (S + r, S + r) for r in range(16)]
    for s in range(2):
        for half in range(2):
            t = S + 4 * (2 * s + half)
            sm += ['v_cvt_pk_bf16_f32 v%d, v%d, v%d' % (52 + 4 * s + 2 * half, t, t + 1), 'v_cvt_pk_bf16_f32 v%d, v%d, v%d' % (52 + 4 * s + 2 * half + 1, t + 2, t + 3)]
    sm += ['buffer_store_dwordx4 v[52:55], v23, s[52:55], s33 offen sc1', 'buffer_store_dwordx4 v[56:59], v23, s[52:55], s33 offen offset:1024 sc1']
    smq = [(t, 0) for t in sm[:64]]
    smp = [(t, 0) for t in sm[64:]]
    VW0 = 32; VW1 = 96; OUT = 64
    def vw_cvt(accb, dst, after):
        f = []
        for j in range(4):
            for sp in range(2):
                for half in range(2):
                    t = accb + 4 * (4 * j + 2 * sp + half)
                    d = dst + 4 * (2 * j + sp) + 2 * half
                    f.append(('v_cvt_pk_bf16_f32 v%d, v%d, v%d' % (d, t, t + 1), after))
                    f.append(('v_cvt_pk_bf16_f32 v%d, v%d, v%d' % (d + 1, t + 2, t + 3), after))
        return f
    zero1 = [('v_mov_b32 v%d, 0' % (ACC1 + r), 0) for r in range(64)]
    for n in range(8):
        accb = ACC0 if n < 4 else ACC1
        fillq = []; fillp = []; nq = 1; npf = 1
        if n == 0: fillq = smq; fillp = smp; nq = 4; npf = 4
        if n == 4:
            cvs = vw_cvt(ACC0, VW0, 5)
            fillq = cvs[:8]; fillp = [(t, 0) for t, _ in cvs[8:16]]
        if n == 5:
            cvs = vw_cvt(ACC0, VW0, 0)
            fillq = cvs[16:24]; fillp = cvs[24:]
        mq = [(mm('B', 0, m, q, accb, zero=(n in (0, 4))), nd(m, q, m == 0 and q == 0)) for m in range(4) for q in range(4)]
        run_phase(mq, 12, set_reads('B', 1, -1)[0], fill=fillq, nfill=nq, per=PER)
        mp = [(mm('B', 1, m, q, accb), nd(m, q, m == 0 and q == 0)) for m in range(4) for q in range(4)]
        mp[3] = (mp[3][0], 11)
        if n < 7:
            ev = addr_upd('B', SLOT_OF['B%d' % (n + 1)])
            evs = {3: ev + ['s_barrier']}
            if n == 1:
                evs[14] = ['s_waitcnt vmcnt(0)', 'v_readfirstlane_b32 s72, v62', 'v_readfirstlane_b32 s73, v63', 's_nop 0', 's_or_b32 s32, s72, s73',
                           's_cmp_lg_u32 s32, 0', 's_cbranch_scc1 L_pfok', 'L_pfr:', 's_sleep 4', 'v_mov_b32 v60, 0',
                           'global_load_dwordx2 v[62:63], v60, s[30:31] sc1', 's_waitcnt vmcnt(0)', 'v_readfirstlane_b32 s72, v62', 'v_readfirstlane_b32 s73, v63',
                           's_nop 0', 's_or_b32 s32, s72, s73', 's_cmp_eq_u32 s32, 0', 's_cbranch_scc1 L_pfr', 'L_pfok:', 'v_mov_b32 v60, s49',
                           's_mov_b64 exec, 1', 'buffer_store_dwordx2 v[62:63], v60, s[52:55], 0 offen sc1', 's_mov_b64 exec, -1', 's_nop 3']
            run_phase(mp, 12, set_reads('B', 0, 3)[0], events=evs, fill=fillp, nfill=npf, per=PER)
        else:
            run_phase(mp, 12, [])
    lstamp(comp_st, CV)
    def paddr(k):
        r = 26 + 2 * (k & 1)
        return ['s_lshl_b32 s32, s%d, 11' % (60 + k), 's_add_u32 s39, s32, s47', 's_add_u32 s32, s32, s48',
                'v_add_u32 v%d, s39, v23' % r, 'v_add_u32 v%d, s32, v23' % (r + 1)]
    for t in paddr(0): a(t)
    a('s_barrier')
    PF = [128, 160]
    def p_reads(k, after):
        reads = []; idx = {}
        for pair in range(2):
            for hh in range(2):
                for sp in range(2):
                    n = (pair * 2 + hh) * 2 + sp
                    r = PF[k & 1] + 4 * n
                    reads.append(('ds_read_b128 v[%d:%d], v%d offset:%d' % (r, r + 3, 26 + 2 * (k & 1) + pair, hh * 8192 + sp * 1024), after)); idx[(pair, hh, sp)] = len(reads) - 1
        return reads, idx
    cv1 = vw_cvt(ACC1, VW1, 0)
    GR = 32
    GR = 192
    def outacc(k, nt): return OUT + 8 * k + 4 * nt
    def send(k, after):
        g = GR + 4 * k
        f = []
        for nt in range(2):
            acc = outacc(k, nt)
            f.append(('v_cvt_pk_bf16_f32 v%d, v%d, v%d' % (g + 2 * nt, acc, acc + 1), after))
            f.append(('v_cvt_pk_bf16_f32 v%d, v%d, v%d' % (g + 2 * nt + 1, acc + 2, acc + 3), after))
        f.append(('s_lshl_b32 s32, s%d, 14' % (60 + k), after))
        f.append(('s_add_u32 s43, s36, s32', after))
        f.append(('v_permlane16_swap_b32 v%d, v%d' % (g, g + 2), after))
        f.append(('v_permlane16_swap_b32 v%d, v%d' % (g + 1, g + 3), after))
        f.append(('buffer_store_dwordx4 v[%d:%d], v23, s[52:55], s43 offen sc1' % (g, g + 3), after))
        return f
    old = 0
    rk, ik = p_reads(0, -1)
    for t, _ in rk: a(t)
    for k in range(4):
        mfs = []
        for pair in range(2):
            vw = VW0 if pair == 0 else VW1
            for hh in range(2):
                for sp in range(2):
                    for nt in range(2):
                        j = 2 * hh + nt
                        A = vw + 4 * (2 * j + sp)
                        B = PF[k & 1] + 4 * ((pair * 2 + hh) * 2 + sp)
                        acc = outacc(k, nt)
                        c = '0' if (pair, hh, sp) == (0, 0, 0) else 'v[%d:%d]' % (acc, acc + 3)
                        mfs.append(('v_mfma_f32_16x16x32_bf16 v[%d:%d], v[%d:%d], v[%d:%d], %s' % (acc, acc + 3, A, A + 3, B, B + 3, c), ik[(pair, hh, sp)]))
        fill = []
        nf = 1
        if k == 0: fill = cv1 + [(t, 0) for t in paddr(1)]; nf = 5
        else:
            fill = ([(t, 0) for t in paddr(k + 1)] if k < 3 else []) + send(k - 1, 5); nf = 2
        nxt = p_reads(k + 1, 8)[0] if k < 3 else []
        if k == 0:
            pass
        run_phase(mfs, 8, nxt, per=2, maxout=15, fill=fill, nfill=nf)
        if k < 3: ik = p_reads(k + 1, -1)[1]
    lstamp(comp_st, CV)
    a('s_nop 2')
    a('v_mov_b32 v4, s41')
    a('v_lshlrev_b32 v5, 7, v2')
    a('v_add_u32 v5, s40, v5')
    a('s_cmp_ge_u32 s38, 14')
    a('s_cbranch_scc1 L_fin')
    a0 = outacc(3, 0); b0 = outacc(3, 1)
    for r in range(4): a('v_permlane16_swap_b32 v%d, v%d' % (a0 + r, b0 + r))
    a('s_or_b32 s32, s72, s73')
    a('s_cmp_lg_u32 s32, 0')
    a('s_cbranch_scc1 L_tnok')
    a.label('L_tn')
    a('s_sleep 4')
    a('v_mov_b32 v6, 0')
    a('global_load_dwordx2 v[10:11], v6, s[30:31] sc1')
    a('s_waitcnt vmcnt(0)')
    a('v_readfirstlane_b32 s72, v10')
    a('v_readfirstlane_b32 s73, v11')
    a('s_or_b32 s32, s72, s73')
    a('s_cmp_eq_u32 s32, 0')
    a('s_cbranch_scc1 L_tn')
    a.label('L_tnok')
    a('v_mov_b32 v10, s72'); a('v_mov_b32 v11, s73')
    a('s_lshl_b32 s44, 1, s6')
    a('s_xor_b32 s44, s44, 15')
    a('s_mov_b32 s45, 0')
    a('s_mov_b64 exec, s[44:45]')
    a('buffer_load_dwordx2 v[8:9], v5, s[52:55], 0 offen sc1')
    a('s_waitcnt vmcnt(0)')
    a('s_mov_b64 exec, 1')
    a('buffer_store_dwordx2 v[10:11], v4, s[52:55], 0 offen sc1')
    a('s_mov_b64 exec, s[44:45]')
    lstamp(comp_st, CV)
    a('v_cmp_ne_u64 vcc, v[10:11], v[8:9]')
    a('s_cbranch_vccz L_tpok')
    a.label('L_tpoll')
    a('buffer_load_dwordx2 v[8:9], v5, s[52:55], 0 offen sc1')
    a('s_waitcnt vmcnt(0)')
    a('v_cmp_ne_u64 vcc, v[10:11], v[8:9]')
    a('s_cbranch_vccnz L_tpoll')
    a.label('L_tpok')
    a('s_mov_b64 exec, -1')
    lstamp(comp_st, CV)
    RR = 128
    for k in range(3):
        a('s_lshl_b32 s32, s%d, 12' % (60 + k))
        a('s_add_u32 s43, s37, s32')
        a('buffer_load_dwordx4 v[%d:%d], v23, s[52:55], s43 offen sc1' % (RR + 4 * k, RR + 4 * k + 3))
    own = [a0, a0 + 1, a0 + 2, a0 + 3, b0, b0 + 1, b0 + 2, b0 + 3]
    for k in range(3):
        a('s_waitcnt vmcnt(%d)' % (2 - k))
        for d in range(4):
            r = RR + 4 * k + d
            a('v_lshlrev_b32 v6, 16, v%d' % r)
            a('v_and_b32 v7, 0xffff0000, v%d' % r)
            a('v_add_f32 v%d, v%d, v6' % (own[2 * d], own[2 * d]))
            a('v_add_f32 v%d, v%d, v7' % (own[2 * d + 1], own[2 * d + 1]))
    for d in range(4): a('v_cvt_pk_bf16_f32 v%d, v%d, v%d' % (28 + d, own[2 * d], own[2 * d + 1]))
    a('buffer_store_dwordx4 v[28:31], v24, s[56:59], s42 offen')
    a.label('L_fin')
    n_comp = nst[0]
    def dump(rv, extra_stamp):
        a('s_waitcnt vmcnt(0)')
        a('s_memrealtime s[76:77]')
        a('s_waitcnt lgkmcnt(0)')
        a('v_writelane_b32 v%d, s76, %d' % (rv, extra_stamp))
        a('s_add_u32 s26, s26, %d' % (STAMP_OFF + (1 << 20)))
        a('s_addc_u32 s27, s27, 0')
        a('s_lshl_b32 s3, s2, 8')
        a('v_lshlrev_b32 v14, 2, v2')
        a('v_add_u32 v14, s3, v14')
        a('global_store_dword v14, v%d, s[26:27]' % rv)
    if comp_st:
        a('s_cmp_lg_u32 s14, %d' % cfg.lst)
        a('s_cbranch_scc1 L_done')
        dump(CV, n_comp)
        gen_main.nstamps = n_comp + 1
    a('s_endpgm')

    a.label('L_loader')
    a.inloader = True
    nst[0] = 1
    a('s_sub_u32 s14, s14, 4')
    a('v_lshrrev_b32 v3, 5, v2')
    a('v_and_b32 v4, 31, v2')
    a('v_lshrrev_b32 v4, 1, v4')
    a('v_and_b32 v5, 1, v2')
    a('v_lshlrev_b32 v5, 4, v5')
    a('v_lshrrev_b32 v6, 4, v2')
    a('s_and_b32 s32, s14, 1')
    a('s_lshl_b32 s33, s32, 2')
    a('v_add_u32 v6, s33, v6')
    a('v_and_b32 v7, 7, v2')
    a('v_xor_b32 v6, v6, v7')
    a('v_lshlrev_b32 v6, 4, v6')
    a('v_lshrrev_b32 v7, 3, v2')
    a('v_mul_u32_u24 v9, 896, v7')
    a('v_add_u32 v11, v6, v9')
    a('v_lshlrev_b32 v9, 9, v7')
    a('v_add_u32 v14, v6, v9')
    a('s_lshl_b32 s33, s32, 1')
    a('v_add_u32 v6, s33, v3')
    a('v_xor_b32 v6, v6, v4')
    a('v_lshlrev_b32 v6, 5, v6')
    a('v_lshlrev_b32 v7, 13, v3')
    a('v_add_u32 v6, v6, v7')
    a('v_add_u32 v10, v6, v5')
    a('v_xor_b32 v8, 128, v10')
    a('s_mul_i32 s56, s7, 57344')
    a('s_mul_i32 s32, s14, 7168')
    a('s_add_u32 s56, s56, s32')
    a('s_lshl_b32 s57, s14, 10')
    a('s_lshl_b32 s58, s9, 9')
    a('s_lshl_b32 s33, s14, 14')
    a('s_add_u32 s58, s58, s33')
    if cfg.rot:
        a('s_cmp_eq_u32 s7, 7'); a('s_cselect_b32 s90, 0, s7')
        if cfg.first0:
            a('s_sub_u32 s96, s7, 6'); a('s_cmp_ge_u32 s7, 6'); a('s_cselect_b32 s96, s96, s7'); a('s_add_u32 s96, s96, 1')
            a('s_mov_b32 s90, 0')
        a('s_lshr_b32 s94, s7, 2'); a('s_and_b32 s95, s7, 3')
    else:
        a('s_mov_b32 s90, 0'); a('s_mov_b32 s94, 0'); a('s_mov_b32 s95, 0')
    a('v_lshlrev_b32 v27, 7, v2')
    a('s_waitcnt lgkmcnt(0)')
    if load_st: a('v_writelane_b32 v%d, s78, 0' % LV)
    srd(a, 40, 22, 3670016); srd(a, 36, 16, 458752)
    ops = []; known = [-1]
    def vm(tag, txt):
        a(txt); ops.append(tag)
    def wait_for(tags):
        idxs = [i for i, t in enumerate(ops) if t in tags]
        if not idxs: return
        m = max(idxs)
        if m <= known[0]: return
        n = len(ops) - 1 - m
        assert n <= 63, n
        a('s_waitcnt vmcnt(%d)' % n); known[0] = m
    def dma(tag, vreg, srdn, gsg, gimm, limm):
        a('s_add_u32 m0, s57, %d' % limm)
        a('s_add_u32 s32, %s, %d' % (gsg, gimm))
        vm(tag, 'buffer_load_dwordx4 %s, s[%d:%d], s32 offen%s lds' % (vreg, srdn, srdn + 3, ' nt' if (tag in cfg.ntset and vreg not in ('v11', 'v14')) else ''))
    def item_pieces(it):
        sl = SLOT_OF[it]
        L = []; pre = []; post = []
        if it[0] == 'W':
            pre = ['s_lshl_b32 s92, s90, 19', 's_add_u32 s92, s92, s58', 's_lshl_b32 s93, s90, 7', 's_add_u32 s93, s93, s56']
            for t in range(8):
                L.append(('v10' if t % 2 == 0 else 'v8', 40, 's92', t * 65536, sl + t * 4096))
                if t == 1: L.append(('v11', 36, 's93', 0, sl + 32768))
                if t == 3: L.append(('v11', 36, 's93', 4 * 7168, sl + 32768 + 4096))
            if cfg.first0 and cfg.rot:
                if it == 'W0': pre += ['s_mov_b32 s90, s96']
                else: pre += ['s_add_u32 s90, s90, 1', 's_cmp_ge_u32 s90, 7', 's_cselect_b32 s90, 1, s90']
            else:
                pre += ['s_add_u32 s90, s90, 1', 's_cmp_ge_u32 s90, 7', 's_cselect_b32 s90, 0, s90']
        elif it == 'K':
            for t in range(8): L.append(('v13' if t & 1 else 'v12', 44, 's60', t * 4096, sl + t * 4096))
        else:
            n = int(it[1])
            pre = ['s_add_u32 s91, s95, %d' % n, 's_and_b32 s91, s91, 3', 's_xor_b32 s89, s94, %d' % (n >> 2),
                   's_mul_i32 s92, s89, %d' % (2 * 229376), 's_mul_i32 s88, s91, 57344', 's_add_u32 s92, s92, s88', 's_add_u32 s92, s92, s59',
                   's_lshl_b32 s93, s89, 15', 's_lshl_b32 s88, s91, 7', 's_add_u32 s93, s93, s88', 's_add_u32 s93, s93, s61']
            for t in range(8):
                L.append(('v15', 52, 's92', (t >> 2) * 229376 + (t & 3) * 16 * 896, sl + t * 4096))
                if t == 1 and not cfg.nov: L.append(('v14', 48, 's93', 0, sl + 32768))
                if t == 3 and not cfg.nov: L.append(('v14', 48, 's93', 4 * 4096, sl + 32768 + 4096))
        return pre, L
    LOADS = ['W0','W1','W2','W3','W4','W5','W6','K','B0','B1','B2','B3','B4','B5','B6','B7']
    stream = []
    endidx = {}
    for it in LOADS:
        pre, L = item_pieces(it)
        for k, pc in enumerate(L): stream.append((it, k, pre if k == 0 else [], pc))
        endidx[it] = len(stream)
    FREE = dict(W0=-1, W1=-1, W2=-1, W3=-1, W4=1, W5=2, W6=3, K=4, B0=5, B1=7, B2=8, B3=8, B4=9, B5=10, B6=11, B7=12)
    pos = [0]
    hooks = {}
    def issue_upto(limit, e):
        while pos[0] < min(limit, len(stream)):
            it, k, pre, (vr, sr, gs, gi, lo) = stream[pos[0]]
            if FREE[it] > e: break
            for t in pre: a(t)
            dma(it, vr, sr, gs, gi, lo)
            pos[0] += 1
            if pos[0] == endidx[it] and it in hooks: hooks[it]()
    def touch(srdn, soff, nl):
        a('s_mov_b64 s[34:35], exec')
        a('s_mov_b32 exec_lo, 0x%x' % ((1 << nl) - 1)); a('s_mov_b32 exec_hi, 0')
        vm('T', 'buffer_load_dword v31, v27, s[%d:%d], %s offen%s' % (srdn, srdn + 3, soff, ' nt' if 'T' in cfg.ntset else ''))
        a('s_mov_b64 exec, s[34:35]')
    def xt():
        a('s_mul_i32 s32, s8, 112'); a('s_mul_i32 s33, s14, 28'); a('s_add_u32 s32, s32, s33'); a('s_lshl_b32 s32, s32, 7')
        a('s_mul_i32 s33, s7, 57344'); a('s_add_u32 s33, s32, s33')
        touch(36, 's33', 28)
    def vt():
        a('s_lshl_b32 s32, s8, 14'); a('s_add_u32 s33, s62, s32'); a('s_lshl_b32 s32, s14, 12'); a('s_add_u32 s33, s33, s32')
        touch(48, 's33', 32)
    def kt():
        a('s_lshl3_add_u32 s33, s7, s10'); a('s_lshl_b32 s33, s33, 15'); a('s_and_b32 s32, s8, 1'); a('s_lshl_b32 s32, s32, 14'); a('s_add_u32 s33, s33, s32')
        a('s_lshl_b32 s32, s14, 12'); a('s_add_u32 s33, s33, s32')
        touch(44, 's33', 32)
    if cfg.xtouch: hooks['W0'] = xt
    if cfg.ktouch: hooks[cfg.ktouch] = kt
    if cfg.vtouch: hooks['B0'] = vt
    issue_upto(endidx['W0'], -1)
    srd(a, 44, 18, 2097152); srd(a, 48, 20, 2097152); srd(a, 52, 24, 3670016)
    srd(a, 64, 26, WS_SRD_BYTES)
    a('s_lshl3_add_u32 s60, s7, s10')
    a('s_lshl_b32 s60, s60, 15')
    a('s_add_u32 s60, s60, s57')
    a('s_lshl_b32 s32, s6, 1')
    a('s_lshl3_add_u32 s61, s7, s32')
    a('s_lshl_b32 s61, s61, 15')
    a('s_mov_b32 s62, s61')
    a('s_lshl_b32 s32, s14, 12')
    a('s_add_u32 s61, s61, s32')
    a('s_mul_i32 s59, s6, %d' % (4 * 229376))
    a('s_lshl_b32 s32, s8, 8')
    a('s_add_u32 s59, s59, s32')
    a('s_mul_i32 s32, s14, 3584')
    a('s_add_u32 s59, s59, s32')
    a('s_lshl_b32 s32, s14, 1')
    a('v_add_u32 v6, s32, v3')
    a('v_and_b32 v7, 31, v2')
    a('v_xor_b32 v7, v7, v6')
    a('v_lshlrev_b32 v7, 4, v7')
    a('v_lshlrev_b32 v20, 9, v3')
    a('v_add_u32 v12, v7, v20')
    a('v_xor_b32 v13, 128, v12')
    a('v_lshrrev_b32 v6, 4, v2')
    a('s_lshr_b32 s32, s14, 1')
    a('s_lshl_b32 s32, s32, 2')
    a('v_add_u32 v7, s32, v6')
    a('v_and_b32 v20, 15, v2')
    a('v_lshrrev_b32 v20, 1, v20')
    a('v_xor_b32 v7, v7, v20')
    a('v_lshlrev_b32 v7, 5, v7')
    a('v_mul_u32_u24 v6, 896, v6')
    a('v_add_u32 v7, v7, v6')
    a('v_add_u32 v15, v7, v5')
    a('v_lshlrev_b32 v16, 4, v2')
    a('v_add_u32 v17, s57, v16')
    a('v_mov_b32 v22, 0')
    a('v_mov_b32 v24, 0'); a('v_mov_b32 v25, 0')
    a('s_lshl2_add_u32 s32, s15, s6')
    a('s_lshl2_add_u32 s32, s32, s14')
    a('s_lshl_b32 s32, s32, 9')
    a('s_add_u32 s32, s32, %d' % FLAGP_OFF)
    a('s_add_u32 s68, s26, s32')
    a('s_addc_u32 s69, s27, 0')
    a('s_mov_b32 s72, 0'); a('s_mov_b32 s73, 0')
    issue_upto(endidx['W0'] + cfg.cap, -1)
    a('s_or_b32 s32, s2, s14')
    a('s_cmp_lg_u32 s32, 0')
    a('s_cbranch_scc1 L_nononce')
    a('s_memrealtime s[32:33]')
    a('s_waitcnt lgkmcnt(0)')
    a('s_or_b32 s32, s32, 1')
    a('v_mov_b32 v20, s32'); a('v_mov_b32 v21, s33')
    a('s_mov_b64 s[34:35], exec')
    a('s_mov_b64 exec, 1')
    a('global_store_dwordx2 v22, v[20:21], s[30:31] sc1')
    a('s_mov_b64 exec, s[34:35]')
    a.label('L_nononce')
    lstamp(load_st, LV)
    wait_for(['W0'])
    lstamp(load_st, LV)
    a('s_barrier')
    NEED = {1: ['W1'], 2: ['W2'], 3: ['W3'], 4: ['W4'], 5: ['W5'], 6: ['W6'] + (['K'] if cfg.kpre else []), 7: ['K'], 8: ['B0'], 9: ['B1'], 10: ['B2'], 11: ['B3'],
            12: ['B4'], 13: ['B5'], 14: ['B6'], 15: ['B7'], 16: ['P']}
    lab = [0]
    def w3_only(fn):
        lab[0] += 1
        L = 'L_w3s_%d' % lab[0]
        a('s_cmp_lg_u32 s14, 3')
        a('s_cbranch_scc1 %s' % L)
        fn()
        a.label(L)
    def nonce_check():
        lab[0] += 1
        Lg = 'L_gn_%d' % lab[0]; Lh = 'L_hn_%d' % lab[0]
        a.label(Lg)
        a('v_readfirstlane_b32 s72, v24')
        a('v_readfirstlane_b32 s73, v25')
        a('s_or_b32 s32, s72, s73')
        a('s_cmp_lg_u32 s32, 0')
        a('s_cbranch_scc1 %s' % Lh)
        a('s_sleep 4')
        a('global_load_dwordx2 v[24:25], v22, s[30:31] sc1')
        a('s_waitcnt vmcnt(0)')
        a('s_branch %s' % Lg)
        a.label(Lh)
    def flag_write(off, idx_code):
        idx_code()
        a('s_lshl_b32 s32, s32, 7')
        a('s_add_u32 s32, s32, %d' % off)
        a('v_mov_b32 v26, s32')
        a('s_mov_b64 s[34:35], exec')
        a('s_mov_b64 exec, 1')
        a('buffer_store_dwordx2 v[24:25], v26, s[64:67], 0 offen sc1')
        a('s_mov_b64 exec, s[34:35]')
    def spoll_issue():
        for k in range(4): a('s_load_dwordx2 s[%d:%d], s[68:69], 0x%x glc' % (80 + 2 * k, 81 + 2 * k, 128 * k))
    def spoll_check():
        lab[0] += 1
        Lp = 'L_sp_%d' % lab[0]; Lo = 'L_so_%d' % lab[0]; Lr = 'L_sr_%d' % lab[0]
        a.label(Lp)
        a('s_waitcnt lgkmcnt(0)')
        for k in range(4):
            a('s_cmp_eq_u64 s[%d:%d], s[72:73]' % (80 + 2 * k, 81 + 2 * k))
            a('s_cbranch_scc0 %s' % Lr)
        a('s_branch %s' % Lo)
        a.label(Lr)
        a('s_sleep 2')
        spoll_issue()
        a('s_branch %s' % Lp)
        a.label(Lo)
    def idxP_own(): a('s_lshl2_add_u32 s32, s15, s6'); a('s_lshl2_add_u32 s32, s32, s8')
    for e in range(16):
        nd = NEED[e + 1]
        last = max([endidx.get(x, len(stream)) for x in nd]) if nd else len(stream)
        issue_upto(last + cfg.capx.get(e, cfg.cap), e)
        if e == 6:
            vm('N', 'global_load_dwordx2 v[24:25], v22, s[30:31]')
        if e == 10:
            wait_for(['N'])
            nonce_check()
        if e == 13:
            spoll_check()
            a('s_lshl2_add_u32 s33, s15, s6')
            a('s_lshl_b32 s33, s33, 15')
            a('s_lshl_b32 s34, s14, 11')
            a('s_add_u32 s33, s33, s34')
            for t in range(8):
                a('s_add_u32 m0, s34, %d' % (PBUF + (t >> 1) * 8192 + (t & 1) * 1024))
                a('s_add_u32 s32, s33, %d' % (P_OFF + (t >> 1) * 8192 + (t & 1) * 1024))
                vm('P', 'buffer_load_dwordx4 v16, s[64:67], s32 offen sc1 lds')
        wait_for(NEED[e + 1])
        if e == 11: spoll_issue()
        a('s_barrier')
        lstamp(load_st, LV)
    n_load = nst[0]
    if load_st:
        a('s_cmp_lg_u32 s14, %d' % (cfg.lst - 4))
        a('s_cbranch_scc1 L_done')
        dump(LV, n_load)
        gen_main.nstamps = n_load + 1
    a.label('L_done')
    a('s_endpgm')
    return a.text()

def build(cfg):
    K = NAME + '_kernel'
    return kernel_file([(K, gen_main(cfg), 256, 102, 256)], [(K, (256, 1, 1), (512, 1, 1), LDS_BYTES)])

def mk(name, **kw):
    c = Cfg()
    for k, v in kw.items(): setattr(c, k, v)
    open(name, 'w').write(build(c))
    if c.lst is not None: print(name, 'nstamps', gen_main.nstamps)

if __name__ == '__main__':
    mk('v18.s')
    mk('v18_c.s', lst=0)
    mk('v18_l.s', lst=4)
    mk('v18_l_noload.s', lst=4, noload=True)
```
